```python
import torch

def _softmax(x, axis=-1):
    return torch.softmax(x, dim=axis)
def _gelu(x):
    return torch.nn.functional.gelu(x, approximate="tanh")
def _silu(x):
    return torch.nn.functional.silu(x)
def _sigmoid(x):
    return torch.sigmoid(x)
def _layernorm(x, axis=-1, eps=1e-5):
    m = x.mean(dim=axis, keepdim=True)
    v = x.var(dim=axis, keepdim=True, unbiased=False)
    return (x - m) / torch.sqrt(v + eps)
def _scatter_add(tgt, idx, src, axis=0):
    return tgt.clone().index_add_(axis, idx, src)
def _segment_sum(src, seg, n):
    out = torch.zeros((n,) + src.shape[1:], dtype=src.dtype)
    return out.index_add_(0, seg, src)
def _pad(x, pw):
    flat = tuple(v for pair in reversed(pw) for v in pair)
    return torch.nn.functional.pad(x, flat)

kernel_name = 'standalone__gqa_block_cached__near_ridge'

def setup_inputs():

    _w = (lambda a: (lambda t: t.to(torch.bfloat16) if t.is_floating_point() else t)(torch.as_tensor(a)))
    B, Sq, D = 16, 96, 576
    Hq, Hkv, Sk, Dh = 32, 16, 512, 128
    assert Hq % Hkv == 0, (Hq, Hkv)
    return {
        "x": _w((lambda *s: torch.randn(*s, dtype=torch.bfloat16) * 0.8)(B, Sq, D)),
        "k_cache": _w((lambda *s: torch.randn(*s, dtype=torch.bfloat16) * 0.8)(B, Hkv, Sk, Dh)),
        "v_cache": _w((lambda *s: torch.randn(*s, dtype=torch.bfloat16) * 0.05)(B, Hkv, Sk, Dh)),
        "wq": _w((lambda *s: torch.randn(*s, dtype=torch.bfloat16) * 0.8)(D, Hq * Dh) * (D ** -0.5)),
        "wo": _w((lambda *s: torch.randn(*s, dtype=torch.bfloat16) * 0.05)(Hq * Dh, D) * ((Hq * Dh) ** -0.5)),
    }

def reference(x, k_cache, v_cache, wq, wo):
    B, Sq, D = x.shape
    Hq, Dh = 32, 128
    Hkv = k_cache.shape[1]
    rep = Hq // Hkv
    q = (lambda x, *d: x.permute(*d))((x @ wq).reshape(B, Sq, Hq, Dh), 0, 2, 1, 3)
    k = (lambda x, n, axis: torch.repeat_interleave(x, n, dim=axis))(k_cache, rep, axis=1)
    v = (lambda x, n, axis: torch.repeat_interleave(x, n, dim=axis))(v_cache, rep, axis=1)
    scores = torch.einsum("bhqd,bhkd->bhqk", q, k) * (Dh ** -0.5)
    p = _softmax(scores, axis=-1)
    o = torch.einsum("bhqk,bhkd->bhqd", p, v)
    return (lambda x, *d: x.permute(*d))(o, 0, 2, 1, 3).reshape(B, Sq, Hq * Dh) @ wo
```

```python
NAME = "standalone__gqa_block_cached__near_ridge"
class Asm:
    def __init__(self):
        self.L = []
    def __call__(self, s):
        for line in s.split("\n"):
            self.L.append(line)
    def text(self):
        return "\n".join(self.L) + "\n"

def header(a, launches):
    if len(launches) == 1 and launches[0][0] == NAME + "_kernel":
        _, g, b, lds = launches[0]
        a(f"; @launch grid=({g},1,1) block=({b},1,1) lds={lds}")
    else:
        for (lab, g, b, lds) in launches:
            a(f"; @launch kernel={lab} grid=({g},1,1) block=({b},1,1) lds={lds}")
    a('.amdgcn_target "amdgcn-amd-amdhsa--gfx950"')
    a(".text")

def kstart(a, lab):
    a(f".globl {lab}")
    a(".p2align 8")
    a(f".type {lab},@function")
    a(f"{lab}:")

def kdesc(a, lab, vgpr=256, sgpr=102, accum=256):
    a('.section .rodata,"a"')
    a(".p2align 6")
    a(f".amdhsa_kernel {lab}")
    a(f"  .amdhsa_next_free_vgpr {vgpr}")
    a(f"  .amdhsa_next_free_sgpr {sgpr}")
    a(f"  .amdhsa_accum_offset {accum}")
    a("  .amdhsa_group_segment_fixed_size 0")
    a("  .amdhsa_kernarg_size 64")
    a("  .amdhsa_user_sgpr_count 2")
    a("  .amdhsa_user_sgpr_kernarg_segment_ptr 1")
    a("  .amdhsa_system_sgpr_workgroup_id_x 1")
    a(".end_amdhsa_kernel")

def srd(a, d, base, nbytes):
    a(f"s_mov_b32 s{d}, s{base}")
    a(f"s_and_b32 s{d+1}, s{base+1}, 0xffff")
    a(f"s_mov_b32 s{d+2}, {hex(nbytes)}")
    a(f"s_mov_b32 s{d+3}, 0x20000")
```

```python
import sys, struct
from asmlib import *

def f32hex(x):
    return "0x%08x" % struct.unpack("<I", struct.pack("<f", x))[0]

MF = "v_mfma_f32_16x16x32_bf16"
def vr(b, n=4): return f"v[{b}:{b+n-1}]"

class Stream:
    def __init__(self):
        self.q = []
    def run(self, ops):
        out = []
        for op in ops:
            k = op[0]
            if k == 'R':
                out.append(op[1]); self.q.append(op[2])
            elif k in ('M', 'W'):
                needs = op[2]
                idx = -1
                for i, t in enumerate(self.q):
                    if t in needs: idx = i
                if idx >= 0:
                    n = len(self.q) - 1 - idx
                    assert n <= 15
                    out.append(f"s_waitcnt lgkmcnt({n})")
                    self.q = self.q[idx+1:]
                if op[1]: out.append(op[1])
            elif k == 'Z':
                out.append("s_waitcnt lgkmcnt(0)"); self.q = []
            else:
                out.append(op[1])
        return out

V_O = 0
V_Q = 96
V_S = 144
V_P = 192
V_L = 216
V_ONE = 228
V_FR = 232
V_A0, V_A1, V_A2, V_A3 = 248, 249, 250, 251
V_LANE = 252
V_T0, V_T1, V_T2 = 253, 254, 255

S_X, S_K, S_V, S_WQ, S_WO, S_WS, S_OUT = 20, 24, 28, 32, 36, 40, 44
S_B, S_H, S_W = 48, 49, 50
S_CNT, S_SLOT, S_D0, S_D1 = 51, 52, 53, 54
S_SC = 56
S_T = 58
S_KVOFF, S_XOFF, S_WQOFF, S_WOOFF, S_LW, S_PART = 64, 65, 66, 67, 68, 69
S_ST = 72

L_X = 96 * 1024
L_EX = 96 * 1024
PART_BYTES = 110592
STAMP_OFF = 0x8000000

class Gen:
    def __init__(self, stamps=False, kvpol=" nt", spol="", force_slow=False):
        self.a = Asm(); self.stamps = stamps; self.kvpol = kvpol; self.spol = spol
        self.force_slow = force_slow
        self.nst = 0
    def stamp(self, i):
        if self.stamps:
            self.a(f"s_memrealtime s[{S_ST+2*i}:{S_ST+2*i+1}]")
            self.a("s_waitcnt lgkmcnt(0)")
    def emit(self, lines):
        for l in lines: self.a(l)

    def prologue(self):
        a = self.a
        a("s_cmp_ge_u32 s2, 256")
        a("s_cbranch_scc1 L_done")
        a("s_load_dwordx16 s[4:19], s[0:1], 0")
        if self.stamps: a(f"s_memrealtime s[{S_ST}:{S_ST+1}]")
        a(f"v_lshrrev_b32 v1, 6, v0")
        a(f"v_and_b32 v{V_LANE}, 63, v0")
        a(f"s_and_b32 s{S_T}, s2, 1"); a(f"s_lshl_b32 s{S_T}, s{S_T}, 3")
        a(f"s_bfe_u32 s{S_T+1}, s2, 0x30003"); a(f"s_add_u32 s{S_B}, s{S_T}, s{S_T+1}")
        a(f"v_readfirstlane_b32 s{S_W}, v1")
        a(f"s_bfe_u32 s{S_T}, s2, 0x20001"); a(f"s_lshl_b32 s{S_T}, s{S_T}, 2")
        a(f"s_lshr_b32 s{S_T+1}, s2, 6"); a(f"s_add_u32 s{S_H}, s{S_T}, s{S_T+1}")
        a(f"s_lshl_b32 s{S_T}, s{S_B}, 4"); a(f"s_add_u32 s{S_T}, s{S_T}, s{S_H}")
        a(f"s_lshl_b32 s{S_KVOFF}, s{S_T}, 17")
        a(f"s_mul_i32 s{S_PART}, s{S_T}, {PART_BYTES}")
        a(f"s_mul_i32 s{S_XOFF}, s{S_B}, 110592")
        a(f"s_lshl_b32 s{S_WQOFF}, s{S_H}, 9")
        a(f"s_mul_i32 s{S_WOOFF}, s{S_H}, {256*1152}")
        a("s_waitcnt lgkmcnt(0)")
        srd(a, S_X, 4, 16*96*576*2)
        srd(a, S_WQ, 10, 576*4096*2)
        srd(a, S_K, 6, 16*16*512*128*2)
        srd(a, S_V, 8, 16*16*512*128*2)
        srd(a, S_WO, 12, 4096*576*2)
        srd(a, S_WS, 18, 0x10000000)
        a(f"s_cmp_ge_u32 s{S_W}, 4")
        a("s_cbranch_scc1 L_loader")

    def loader(self):
        a = self.a
        a("L_loader:")
        L = V_LANE
        vWq, vX, vK, vV, vWo, t0, t1, t2 = 1, 2, 3, 4, 5, 6, 7, 8
        a(f"s_sub_u32 s{S_LW}, s{S_W}, 4")
        lw = S_LW
        a(f"v_and_b32 v{t0}, 3, v{L}")
        a(f"v_bfe_u32 v{t1}, v{L}, 2, 2")
        a(f"v_lshrrev_b32 v{t2}, 4, v{L}")
        a(f"s_and_b32 s{S_T}, s{lw}, 1")
        a(f"v_xor_b32 v{vWq}, s{S_T}, v{t0}")
        a(f"v_lshlrev_b32 v{vWq}, 4, v{vWq}")
        a(f"v_lshl_add_u32 v{vWq}, v{t2}, 6, v{vWq}")
        a(f"v_lshl_add_u32 v{vWq}, v{t1}, 13, v{vWq}")
        a(f"s_lshl_b32 s{S_T+1}, s{lw}, 16")
        a(f"v_add_u32 v{vWq}, s{S_T+1}, v{vWq}")
        a(f"v_and_b32 v9, 1, v{t2}")
        a(f"s_lshl_b32 s{S_T+1}, s{S_T}, 1")
        a(f"v_add_u32 v9, s{S_T+1}, v9")
        a(f"v_sub_u32 v9, 0, v9")
        a(f"v_and_b32 v9, 3, v9")
        a(f"v_xor_b32 v9, v9, v{t0}")
        a(f"v_lshlrev_b32 v9, 4, v9")
        a(f"v_lshrrev_b32 v10, 5, v{L}")
        a(f"v_lshl_add_u32 v9, v10, 6, v9")
        a(f"v_bfe_u32 v11, v{L}, 2, 3")
        a(f"s_lshl_b32 s{S_T+1}, s{lw}, 3")
        a(f"v_add_u32 v11, s{S_T+1}, v11")
        a(f"s_movk_i32 s{S_T+2}, 1152")
        a(f"v_mad_u32_u24 v{vX}, v11, s{S_T+2}, v9")
        a(f"v_and_b32 v9, 1, v{t2}")
        a(f"v_lshlrev_b32 v9, 1, v9")
        a(f"v_xor_b32 v9, v9, v{t0}")
        a(f"v_lshlrev_b32 v9, 4, v9")
        a(f"v_lshl_add_u32 v9, v10, 6, v9")
        a(f"v_mad_u32_u24 v{vWo}, v11, s{S_T+2}, v9")
        a(f"s_sub_u32 s{S_T+1}, 0, s{lw}"); a(f"s_and_b32 s{S_T+1}, s{S_T+1}, 3")
        a(f"v_lshlrev_b32 v9, 8, v{t1}")
        a(f"v_lshl_add_u32 v9, v{t2}, 6, v9")
        a(f"s_lshl_b32 s{S_T+2}, s{lw}, 10")
        a(f"v_add_u32 v9, s{S_T+2}, v9")
        a(f"v_xor_b32 v10, s{S_T+1}, v{t0}")
        a(f"v_lshl_add_u32 v{vK}, v10, 4, v9")
        a(f"s_lshl_b32 s{S_T+1}, s{S_T}, 1")
        a(f"v_xor_b32 v10, s{S_T+1}, v{t0}")
        a(f"v_lshl_add_u32 v{vV}, v10, 4, v9")
        a(f"s_lshl_b32 s70, s{lw}, 10"); a(f"s_lshl_b32 s71, s{lw}, 12")

        issued = []
        def piece(item, ldsbase_s, ldsimm, voff, srd_, sbase, gimm, pol):
            a(f"s_add_u32 m0, s{ldsbase_s}, {ldsimm}")
            a(f"s_add_u32 s{S_T}, s{sbase}, {gimm}")
            a(f"buffer_load_dwordx4 v{voff}, s[{srd_}:{srd_+3}], s{S_T} offen{pol} lds")
            issued.append(item)
        def load(item):
            kind, t = item
            if kind == 'wq':
                for p in range(4):
                    piece(item, 71, (t % 6) * 16384 + p * 1024, vWq, S_WQ, S_WQOFF, t * 32 * 8192 + (p >> 1) * 32768 + (p & 1) * 256, "")
            elif kind == 'x':
                for p in range(3):
                    piece(item, 70, L_X + (t % 3) * 12288 + p * 4096, vX, S_X, S_XOFF, t * 128 + p * 32 * 1152, "")
            elif kind == 'kv':
                if t < 16:
                    for p in range(2):
                        piece(item, 70, (t % 6) * 16384 + p * 4096, vK, S_K, S_KVOFF, t * 8192 + p * 4096, self.kvpol)
                if t >= 2:
                    for p in range(2):
                        piece(item, 70, (t % 6) * 16384 + 8192 + p * 4096, vV, S_V, S_KVOFF, (t - 2) * 8192 + p * 4096, self.kvpol)
            elif kind == 'wo':
                nb, hd = t >> 1, t & 1
                for p in range(4):
                    piece(item, 70, (nb % 5) * 32768 + hd * 16384 + p * 4096, vWo, S_WO, S_WOOFF, (hd * 128 + p * 32) * 1152 + nb * 128, "")
        bars = []
        for t in range(18): bars.append((f"B{t}", [('wq', t)] + ([('x', t // 2)] if t % 2 == 0 else [])))
        bars.append(("B18", []))
        for t in range(18): bars.append((f"C{t}", [('kv', t)]))
        for n in range(9): bars.append((f"D{n}", [('wo', 2 * n), ('wo', 2 * n + 1)]))
        bars.append(("D9", []))
        bi = {n: i for i, (n, _) in enumerate(bars)}
        order = []
        for t in range(18):
            if t % 2 == 0:
                c = t // 2
                order.append((('x', c), -1 if c < 3 else bi[f"B{2*(c-3)+3}"]))
            order.append((('wq', t), -1 if t < 6 else bi[f"B{t-4}"]))
        for t in range(18):
            if t < 5: rel = bi[f"B{t+14}"]
            elif t == 5: rel = bi["C0"]
            else: rel = bi[f"C{t-4}"]
            order.append((('kv', t), rel))
        for h in range(18):
            nb, hd = h >> 1, h & 1
            if nb < 2: rel = bi[f"C{12 + h + 2}"]
            elif nb == 2: rel = bi["D0"]
            elif nb < 5: rel = bi["D1"]
            else: rel = bi[f"D{nb-3}"]
            order.append((('wo', h), rel))
        pos = 0
        def issue_ready(cur):
            nonlocal pos
            while pos < len(order) and order[pos][1] <= cur:
                load(order[pos][0]); pos += 1
        issue_ready(-1)
        lastwait = None
        for i, (name, needs) in enumerate(bars):
            if needs:
                idx = max(j for j, it in enumerate(issued) if it in needs)
                for nd in needs: assert nd in issued, (name, nd)
                n = len(issued) - 1 - idx
                assert n <= 63
                a(f"s_waitcnt vmcnt({n})")
            a("s_barrier")
            if self.stamps and name in ("B0", "C0", "D0"):
                pass
            issue_ready(i)
        assert pos == len(order)
        a("s_branch L_done")
        self.nbars = len(bars)

    def ring_adv(self, nslots, dpos, dneg, dpos2=None, dneg2=None):
        o = [f"s_add_u32 s{S_SLOT}, s{S_SLOT}, 1",
             f"s_cmp_eq_u32 s{S_SLOT}, {nslots}",
             f"s_cselect_b32 s{S_SLOT}, 0, s{S_SLOT}",
             f"s_cselect_b32 s{S_D0}, s60, s61"]
        if dpos2 is not None: o.append(f"s_cselect_b32 s{S_D1}, s62, s63")
        return o

    def phase1(self, st):
        a = self.a
        L = V_LANE
        a(f"s_lshr_b32 s{S_T}, s{S_W}, 1")
        a(f"s_and_b32 s{S_T+1}, s{S_W}, 1")
        a(f"v_lshrrev_b32 v{V_T0}, 4, v{L}")
        a(f"v_and_b32 v{V_T1}, 3, v{L}")
        a(f"v_and_b32 v{V_T2}, 1, v{V_T0}")
        a(f"v_xor_b32 v{V_A0}, v{V_T1}, v{V_T2}")
        a(f"v_lshlrev_b32 v{V_A0}, 4, v{V_A0}")
        a(f"v_lshl_add_u32 v{V_A0}, v{V_T0}, 12, v{V_A0}")
        a(f"v_and_b32 v{V_A1}, 1, v{V_T1}")
        a(f"v_lshl_add_u32 v{V_A0}, v{V_A1}, 3, v{V_A0}")
        a(f"v_bfe_u32 v{V_A1}, v{L}, 2, 2")
        a(f"v_lshl_add_u32 v{V_A0}, v{V_A1}, 6, v{V_A0}")
        a(f"s_lshl_b32 s{S_T+2}, s{S_T}, 10")
        a(f"v_add_u32 v{V_A0}, s{S_T+2}, v{V_A0}")
        a(f"v_xor_b32 v{V_A1}, 8, v{V_A0}")
        a(f"v_bfe_u32 v{V_A2}, v{L}, 2, 2")
        a(f"v_sub_u32 v{V_A2}, 0, v{V_A2}")
        a(f"v_and_b32 v{V_A2}, 3, v{V_A2}")
        a(f"v_xor_b32 v{V_A2}, v{V_A2}, v{V_T0}")
        a(f"v_lshlrev_b32 v{V_A2}, 4, v{V_A2}")
        a(f"v_mov_b32 v{V_A3}, v{V_A2}")
        a(f"v_and_b32 v{V_T1}, 7, v{L}")
        a(f"v_lshl_add_u32 v{V_A2}, v{V_T1}, 6, v{V_A2}")
        a(f"v_bfe_u32 v{V_T1}, v{L}, 3, 1")
        a(f"v_lshl_add_u32 v{V_A2}, v{V_T1}, 10, v{V_A2}")
        a(f"s_mul_i32 s{S_T+2}, s{S_T+1}, 6144")
        a(f"s_add_u32 s{S_T+2}, s{S_T+2}, {L_X}")
        a(f"v_add_u32 v{V_A2}, s{S_T+2}, v{V_A2}")
        for r in range(96): a(f"v_mov_b32 v{V_O+r}, 0")
        a(f"s_mov_b32 s{S_SLOT}, 0")
        a(f"s_mov_b32 s60, {-65536 & 0xffffffff}"); a("s_mov_b32 s61, 32768")
        a(f"s_mov_b32 s62, {-24576 & 0xffffffff}"); a("s_mov_b32 s63, 12288")
        XB = V_S
        def rdA(t, f):
            dblk, tl = f >> 1, f & 1
            fr = V_FR + 4 * (f % 4)
            ad = V_A0 if tl == 0 else V_A1
            base = (t & 1) * 16384 + dblk * 256
            return [('R', f"ds_read_b64_tr_b16 {vr(fr,2)}, v{ad} offset:{base}", ('A', t, f, 0)),
                    ('R', f"ds_read_b64_tr_b16 {vr(fr+2,2)}, v{ad} offset:{base+2048}", ('A', t, f))]
        def rdX(t, qt):
            return ('R', f"ds_read_b128 {vr(XB + 12*(t&1) + 4*qt)}, v{V_A2} offset:{qt*2048 + (t&1)*512}", ('X', t, qt))
        pro = [('X', "s_barrier")]
        pro += [rdX(0, q) for q in range(3)]
        for f in range(4): pro += rdA(0, f)
        self.emit(st.run(pro))
        self.stamp(1)
        st.q = [] if self.stamps else st.q
        steps = []
        for t in range(18):
            ops = []
            pend = []
            for f in range(8):
                fr = V_FR + 4 * (f % 4)
                for qt in range(3):
                    acc = V_O + (f * 3 + qt) * 4
                    ops.append(('M', f"{MF} {vr(acc)}, {vr(fr)}, {vr(XB + 12*(t&1) + 4*qt)}, {vr(acc)}", [('A', t, f), ('X', t, qt)]))
                    if qt == 0 and pend: ops.append(pend.pop(0))
                    if qt == 1:
                        if f == 2 and (t & 1): ops += [('X', s) for s in self.ring_adv(3, 0, 0, 0, 0)]
                        if f == 3:
                            ops.append(('X', "s_barrier"))
                            if t & 1: ops.append(('X', f"v_add_u32 v{V_A2}, s{S_D1}, v{V_A2}"))
                            ops.append(rdX(t + 1, 0))
                        if f == 4:
                            if t & 1:
                                ops += [('X', f"v_add_u32 v{V_A0}, s{S_D0}, v{V_A0}"), ('X', f"v_add_u32 v{V_A1}, s{S_D0}, v{V_A1}")]
                            ops += [rdX(t + 1, 1), rdX(t + 1, 2)]
                    if qt == 2:
                        nr = rdA(t, f + 4) if f < 4 else rdA(t + 1, f - 4)
                        ops.append(nr[0])
                        if f == 7: ops.append(nr[1])
                        else: pend.append(nr[1])
            steps.append(st.run(ops))
        self.roll(steps, 0, 2, 9, "L_p1", allow_first=True)
        a("s_nop 7")
        c = f32hex(128 ** -0.5 * 1.4426950408889634)
        a(f"s_mov_b32 s{S_SC}, {c}"); a(f"s_mov_b32 s{S_SC+1}, {c}")
        a("s_mov_b32 vcc_lo, 0xffff0000"); a("s_mov_b32 vcc_hi, 0xffff0000")
        tmp = V_P
        k = 0
        for s in range(4):
            for qt in range(3):
                t0 = V_O + ((2 * s) * 3 + qt) * 4; t1 = V_O + ((2 * s + 1) * 3 + qt) * 4
                for b in (t0, t0 + 2, t1, t1 + 2):
                    a(f"v_pk_mul_f32 {vr(b,2)}, {vr(b,2)}, s[{S_SC}:{S_SC+1}]")
                T = tmp + 4 * (k % 4); k += 1
                a(f"v_cvt_pk_bf16_f32 v{T}, v{t0}, v{t0+1}"); a(f"v_cvt_pk_bf16_f32 v{T+1}, v{t0+2}, v{t0+3}")
                a(f"v_cvt_pk_bf16_f32 v{T+2}, v{t1}, v{t1+1}"); a(f"v_cvt_pk_bf16_f32 v{T+3}, v{t1+2}, v{t1+3}")
                q = V_Q + (qt * 4 + s) * 4
                a(f"v_cndmask_b32 v{q}, v{T}, v{T+2}, vcc"); a(f"v_cndmask_b32 v{q+1}, v{T+1}, v{T+3}, vcc")
                a(f"v_cndmask_b32 v{q+2}, v{T+2}, v{T}, vcc"); a(f"v_cndmask_b32 v{q+3}, v{T+3}, v{T+1}, vcc")

    def roll(self, steps, start, period, trips, label, allow_first=False):
        a = self.a
        body = sum(steps[start + period: start + 2 * period], []) if trips > 1 else sum(steps[start:start + period], [])
        for k in range(trips):
            b = sum(steps[start + k * period: start + (k + 1) * period], [])
            if b != body:
                if k == 0 and allow_first:
                    nb = [x for x in body if not x.startswith("s_waitcnt")]
                    nf = [x for x in b if not x.startswith("s_waitcnt")]
                    assert nb == nf, label
                    self.check_waits(b, body, label)
                else:
                    raise AssertionError(f"loop {label} trip {k} differs")
        a(f"s_mov_b32 s{S_CNT}, {trips}")
        a(f"{label}:")
        self.emit(body)
        a(f"s_sub_u32 s{S_CNT}, s{S_CNT}, 1")
        a(f"s_cmp_lg_u32 s{S_CNT}, 0")
        a(f"s_cbranch_scc1 {label}")
    def check_waits(self, first, body, label):
        def waits(l):
            d = {}; n = 0
            for x in l:
                if x.startswith("s_waitcnt"): d[n] = int(x.split("(")[1][:-1])
                else: n += 1
            return d
        wf, wb = waits(first), waits(body)
        for p, v in wf.items():
            assert p in wb and wb[p] <= v, (label, p, v, wb.get(p))

    def kv_addrs(self, base_imm):
        a = self.a; L = V_LANE
        a(f"v_lshrrev_b32 v{V_T0}, 4, v{L}")
        a(f"v_bfe_u32 v{V_T1}, v{L}, 2, 2")
        a(f"v_sub_u32 v{V_A3}, 0, v{V_T1}")
        a(f"v_and_b32 v{V_A3}, 3, v{V_A3}")
        a(f"v_xor_b32 v{V_A3}, v{V_A3}, v{V_T0}")
        a(f"v_lshlrev_b32 v{V_A3}, 4, v{V_A3}")
        a(f"v_lshl_add_u32 v{V_A3}, v{V_T1}, 10, v{V_A3}")
        a(f"v_and_b32 v{V_T2}, 3, v{L}")
        a(f"v_lshl_add_u32 v{V_A3}, v{V_T2}, 6, v{V_A3}")
        a(f"v_lshlrev_b32 v{V_A0}, 3, v{V_T2}")
        a(f"v_lshl_add_u32 v{V_A0}, v{V_T1}, 6, v{V_A0}")
        a(f"v_lshl_add_u32 v{V_A0}, v{V_T0}, 10, v{V_A0}")
        a(f"v_and_b32 v{V_T0}, 1, v{V_T0}")
        a(f"v_lshl_add_u32 v{V_A0}, v{V_T0}, 5, v{V_A0}")
        a(f"v_xor_b32 v{V_A1}, 32, v{V_A0}")

    def phase2(self, st):
        a = self.a
        self.kv_addrs(0)
        for r in range(4): a(f"v_mov_b32 v{V_ONE+r}, 0x3f803f80")
        a(f"s_mov_b32 s{S_SLOT}, 0")
        def frags(t):
            fl = []
            if t < 16: fl += [('K', i) for i in range(8)]
            if 2 <= t < 18: fl += [('V', i) for i in range(8)]
            return fl
        seq = [(t, k, i) for t in range(18) for (k, i) in frags(t)]
        gidx = {x: n for n, x in enumerate(seq)}
        def rd(n):
            t, k, i = seq[n]
            fr = V_FR + 4 * (n % 4)
            base = (t & 1) * 16384
            if k == 'K':
                kt, s = i >> 2, i & 3
                return [('R', f"ds_read_b128 {vr(fr)}, v{V_A3} offset:{base + kt*4096 + s*256}", n)]
            ad = V_A0 if (i & 1) == 0 else V_A1
            o = base + 8192 + (i >> 1) * 256
            return [('R', f"ds_read_b64_tr_b16 {vr(fr,2)}, v{ad} offset:{o}", (n, 0)),
                    ('R', f"ds_read_b64_tr_b16 {vr(fr+2,2)}, v{ad} offset:{o+4096}", n)]
        pro = [('X', "s_barrier")]
        for n in range(4): pro += rd(n)
        self.emit(st.run(pro))
        self.stamp(2)
        if self.stamps: st.q = []
        steps = []
        zero = [f"v_mov_b32 v{V_O+r}, 0" for r in range(96)] + [f"v_mov_b32 v{V_L+r}, 0" for r in range(12)]
        for t in range(18):
            val = []
            if 1 <= t <= 16:
                sb = V_S + 24 * ((t - 1) & 1); pb = V_P + 12 * ((t - 1) & 1)
                ex = []; cv = []
                for kt in range(2):
                    for qt in range(3):
                        s0 = sb + (kt * 3 + qt) * 4
                        for h in range(2):
                            ex.append([f"v_exp_f32 v{s0+2*h}, v{s0+2*h}", f"v_exp_f32 v{s0+2*h+1}, v{s0+2*h+1}"])
                            cv.append(f"v_cvt_pk_bf16_f32 v{pb + qt*4 + kt*2 + h}, v{s0+2*h}, v{s0+2*h+1}")
                for i in range(12):
                    val += [(8, ex[i][0]), (8, ex[i][1])]
                    if i >= 1: val.append((4, cv[i - 1]))
                val.append((0, "s_nop 0"))
                val.append((4, cv[11]))
            if t == 0: val += [(4, z) for z in zero[:60]]
            if t == 1: val += [(4, z) for z in zero[60:]]
            fl = frags(t)
            groups = [(t, k, i) for (k, i) in fl]
            ops = []
            gaps = []
            pend = []
            for g in groups:
                n = gidx[g]; _, k, i = g
                fr = V_FR + 4 * (n % 4)
                for qt in range(3):
                    if k == 'K':
                        kt, s = i >> 2, i & 3
                        d = V_S + 24 * (t & 1) + (kt * 3 + qt) * 4
                        m = ('M', f"{MF} {vr(d)}, {vr(fr)}, {vr(V_Q + (qt*4+s)*4)}, {'0' if s == 0 else vr(d)}", [n])
                    else:
                        d = V_O + (i * 3 + qt) * 4
                        m = ('M', f"{MF} {vr(d)}, {vr(fr)}, {vr(V_P + 12*(t&1) + qt*4)}, {vr(d)}", [n])
                    fx = []; cost = 0
                    if qt == 0 and pend:
                        fx.append(pend.pop(0)); cost += 4
                    nn = n + 4
                    if qt == 1 and nn < len(seq) and seq[nn][0] != t and seq[nn - 1][0] == t:
                        fx.append(('X', "s_barrier")); cost += 4
                        if t & 1:
                            fx += [('X', f"v_add_u32 v{r}, s{S_D0}, v{r}") for r in (V_A3, V_A0, V_A1)]; cost += 12
                    if qt == 1 and (t & 1) and nn + 1 < len(seq) and seq[nn + 1][0] != t and seq[nn][0] == t:
                        fx += [('X', s) for s in self.ring_adv(3, 0, 0)]; cost += 8
                    if qt == 2:
                        cost += 4
                        if nn < len(seq):
                            nr = rd(nn)
                            fx.append(nr[0]); cost += 4
                            if len(nr) > 1:
                                if g == groups[-1] : fx.append(nr[1]); cost += 4
                                else: pend.append(nr[1])
                    gaps.append([m, fx, cost])
            if t >= 2:
                for qt in range(3):
                    d = V_L + 4 * qt
                    gaps.append([('M', f"{MF} {vr(d)}, {vr(V_ONE)}, {vr(V_P + 12*(t&1) + qt*4)}, {vr(d)}", []), [], 0])
            tot_val = sum(c for c, _ in val)
            free = [max(0, 8 - g[2]) for g in gaps]
            tot_free = sum(free)
            scale = max(1.0, tot_val / tot_free) if tot_free else 1
            budget = 0.0; vi = 0
            for gi, (m, fx, cost) in enumerate(gaps):
                ops.append(m); ops += fx
                budget += free[gi] * scale
                while vi < len(val) and budget >= val[vi][0] - 1e-6:
                    budget -= val[vi][0]; ops.append(('X', val[vi][1])); vi += 1
            while vi < len(val):
                ops.append(('X', val[vi][1])); vi += 1
            steps.append(st.run(ops))
        self.emit(steps[0]); self.emit(steps[1])
        self.roll(steps, 2, 2, 6, "L_p2", allow_first=True)
        for t in (14, 15, 16, 17):
            if t >= 16: a("s_nop 1")
            self.emit(steps[t])

    def slowpath(self):
        a = self.a; L = V_LANE
        a("L_slow:")
        M = V_P + 12
        KO = V_P + 16
        VO0 = V_P + 17
        VO1 = V_P + 18
        PM = V_P + 19
        a(f"v_and_b32 v{V_T0}, 15, v{L}"); a(f"v_lshrrev_b32 v{V_T1}, 4, v{L}")
        a(f"v_lshlrev_b32 v{KO}, 8, v{V_T0}"); a(f"v_lshl_add_u32 v{KO}, v{V_T1}, 4, v{KO}")
        a(f"v_bfe_u32 v{V_T0}, v{L}, 2, 2"); a(f"v_lshlrev_b32 v{VO0}, 8, v{V_T0}")
        a(f"v_lshl_add_u32 v{VO0}, v{V_T1}, 6, v{VO0}")
        a(f"v_and_b32 v{V_T0}, 3, v{L}"); a(f"v_lshl_add_u32 v{VO0}, v{V_T0}, 4, v{VO0}")
        a(f"v_xor_b32 v{VO1}, 32, v{VO0}")
        self.kv_addrs(0)
        a(f"s_mul_i32 s{S_D0}, s{S_W}, 12288"); a(f"s_add_u32 s{S_D0}, s{S_D0}, {L_EX}")
        a(f"v_add_u32 v{V_A0}, s{S_D0}, v{V_A0}"); a(f"v_add_u32 v{V_A1}, s{S_D0}, v{V_A1}")
        for q in range(3): a(f"v_mov_b32 v{M+q}, 0xff800000")
        for r in range(96): a(f"v_mov_b32 v{V_O+r}, 0")
        for r in range(12): a(f"v_mov_b32 v{V_L+r}, 0")
        def qk(kt):
            a(f"s_add_u32 s{S_T}, s61, {kt*4096}")
            for s in range(4):
                a(f"buffer_load_dwordx4 {vr(V_FR+4*s)}, v{KO}, s[{S_K}:{S_K+3}], s{S_T} offen offset:{s*64}")
            a("s_waitcnt vmcnt(0)")
            for s in range(4):
                for qt in range(3):
                    d = V_S + (kt * 3 + qt) * 4
                    a(f"{MF} {vr(d)}, {vr(V_FR+4*s)}, {vr(V_Q + (qt*4+s)*4)}, {'0' if s == 0 else vr(d)}")
            a("s_nop 7"); a("s_nop 3")
        a(f"s_mov_b32 s61, s{S_KVOFF}"); a(f"s_mov_b32 s{S_CNT}, 32")
        a("L_slow1:")
        qk(0)
        for qt in range(3):
            d = V_S + qt * 4
            a(f"v_max3_f32 v{M+qt}, v{M+qt}, v{d}, v{d+1}"); a(f"v_max3_f32 v{M+qt}, v{M+qt}, v{d+2}, v{d+3}")
        a("s_add_u32 s61, s61, 4096")
        a(f"s_sub_u32 s{S_CNT}, s{S_CNT}, 1"); a(f"s_cmp_lg_u32 s{S_CNT}, 0"); a("s_cbranch_scc1 L_slow1")
        for x in (16, 32):
            a(f"v_xor_b32 v{PM}, {x}, v{L}"); a(f"v_lshlrev_b32 v{PM}, 2, v{PM}")
            for qt in range(3): a(f"ds_bpermute_b32 v{V_S+qt}, v{PM}, v{M+qt}")
            a("s_waitcnt lgkmcnt(0)")
            for qt in range(3): a(f"v_max_f32 v{M+qt}, v{M+qt}, v{V_S+qt}")
        a(f"s_mov_b32 s61, s{S_KVOFF}"); a(f"s_mov_b32 s{S_CNT}, 16")
        a("L_slow2:")
        for p in range(8):
            a(f"s_add_u32 m0, s{S_D0}, {p*1024}")
            a(f"s_add_u32 s{S_T}, s61, {p*1024}")
            a(f"buffer_load_dwordx4 v{VO0 if p % 2 == 0 else VO1}, s[{S_V}:{S_V+3}], s{S_T} offen lds")
        qk(0); qk(1)
        for kt in range(2):
            for qt in range(3):
                d = V_S + (kt * 3 + qt) * 4
                for r in range(4): a(f"v_sub_f32 v{d+r}, v{d+r}, v{M+qt}")
                for r in range(4): a(f"v_exp_f32 v{d+r}, v{d+r}")
                a("s_nop 0")
                for h in range(2): a(f"v_cvt_pk_bf16_f32 v{V_P + qt*4 + kt*2 + h}, v{d+2*h}, v{d+2*h+1}")
        for half in range(2):
            for i4 in range(4):
                i = half * 4 + i4
                ad = V_A0 if (i & 1) == 0 else V_A1
                fr = V_FR + 4 * i4
                a(f"ds_read_b64_tr_b16 {vr(fr,2)}, v{ad} offset:{(i>>1)*256}")
                a(f"ds_read_b64_tr_b16 {vr(fr+2,2)}, v{ad} offset:{(i>>1)*256+4096}")
            a("s_waitcnt lgkmcnt(0)")
            for i4 in range(4):
                i = half * 4 + i4
                for qt in range(3):
                    d = V_O + (i * 3 + qt) * 4
                    a(f"{MF} {vr(d)}, {vr(V_FR+4*i4)}, {vr(V_P + qt*4)}, {vr(d)}")
            a("s_nop 7")
        for qt in range(3):
            d = V_L + 4 * qt
            a(f"{MF} {vr(d)}, {vr(V_ONE)}, {vr(V_P + qt*4)}, {vr(d)}")
        a("s_nop 7")
        a("s_add_u32 s61, s61, 8192")
        a(f"s_sub_u32 s{S_CNT}, s{S_CNT}, 1"); a(f"s_cmp_lg_u32 s{S_CNT}, 0"); a("s_cbranch_scc1 L_slow2")
        a("s_nop 7")
        a("s_branch L_norm")

    def phase3(self, st):
        a = self.a; L = V_LANE
        a("s_nop 7"); a("s_nop 1")
        a(f"v_min3_f32 v{V_T0}, v{V_L}, v{V_L+4}, v{V_L+8}")
        a(f"v_max3_f32 v{V_T1}, v{V_L}, v{V_L+4}, v{V_L+8}")
        a(f"v_add_f32 v{V_T2}, v{V_L}, v{V_L+4}")
        a(f"v_add_f32 v{V_T2}, v{V_T2}, v{V_L+8}")
        a(f"v_cmp_nle_f32 vcc, 0x33800000, v{V_T0}")
        a(f"s_mov_b64 s[{S_T}:{S_T+1}], vcc")
        a(f"v_cmp_nge_f32 vcc, 0x4b800000, v{V_T1}")
        a(f"s_or_b64 s[{S_T}:{S_T+1}], s[{S_T}:{S_T+1}], vcc")
        a(f"v_cmp_u_f32 vcc, v{V_T2}, v{V_T2}")
        a(f"s_or_b64 s[{S_T}:{S_T+1}], s[{S_T}:{S_T+1}], vcc")
        if self.force_slow: a("s_branch L_slow")
        a("s_cbranch_scc1 L_slow")
        a("L_norm:")
        BO, BX = V_Q, V_S
        for qt in range(3):
            a(f"v_rcp_f32 v{V_L+4*qt}, v{V_L+4*qt}")
        a(f"s_mul_i32 s{S_T}, s{S_W}, 12288"); a(f"s_add_u32 s{S_T}, s{S_T}, {L_EX}")
        a(f"s_xor_b32 s{S_T+1}, s{S_W}, 2"); a(f"s_mul_i32 s{S_T+1}, s{S_T+1}, 12288"); a(f"s_add_u32 s{S_T+1}, s{S_T+1}, {L_EX}")
        for qt in range(3):
            a(f"v_mov_b32 v{V_L+4*qt+1}, v{V_L+4*qt}")
        a(f"v_lshlrev_b32 v{V_T0}, 4, v{L}")
        a(f"v_add_u32 v{V_T1}, s{S_T+1}, v{V_T0}")
        a(f"v_add_u32 v{V_T0}, s{S_T}, v{V_T0}")
        for ks in range(4):
            for qt in range(3):
                ta = V_O + ((2 * ks) * 3 + qt) * 4; tb = V_O + ((2 * ks + 1) * 3 + qt) * 4
                for b in (ta, ta + 2, tb, tb + 2):
                    a(f"v_pk_mul_f32 {vr(b,2)}, {vr(b,2)}, {vr(V_L+4*qt,2)}")
                d = BO + (ks * 3 + qt) * 4
                a(f"v_cvt_pk_bf16_f32 v{d}, v{ta}, v{ta+1}"); a(f"v_cvt_pk_bf16_f32 v{d+1}, v{ta+2}, v{ta+3}")
                a(f"v_cvt_pk_bf16_f32 v{d+2}, v{tb}, v{tb+1}"); a(f"v_cvt_pk_bf16_f32 v{d+3}, v{tb+2}, v{tb+3}")
                a(f"ds_write_b128 v{V_T0}, {vr(d)} offset:{(ks*3+qt)*1024}")
        a(f"v_and_b32 v{V_A0}, 3, v{L}"); a(f"v_lshlrev_b32 v{V_A0}, 3, v{V_A0}")
        a(f"v_bfe_u32 v{V_A1}, v{L}, 2, 3"); a(f"v_lshl_add_u32 v{V_A0}, v{V_A1}, 6, v{V_A0}")
        a(f"v_bfe_u32 v{V_A1}, v{L}, 4, 1"); a(f"v_lshl_add_u32 v{V_A0}, v{V_A1}, 5, v{V_A0}")
        a(f"v_lshrrev_b32 v{V_A1}, 5, v{L}"); a(f"v_lshl_add_u32 v{V_A0}, v{V_A1}, 10, v{V_A0}")
        a(f"s_lshr_b32 s{S_T}, s{S_W}, 1"); a(f"s_mul_i32 s{S_T}, s{S_T}, {16384+512}")
        a(f"v_add_u32 v{V_A0}, s{S_T}, v{V_A0}")
        a(f"v_xor_b32 v{V_A1}, 32, v{V_A0}")
        a(f"v_xor_b32 v{V_A2}, 0x4000, v{V_A0}")
        a(f"v_xor_b32 v{V_A3}, 0x4000, v{V_A1}")
        VST = V_T2
        a(f"s_mul_i32 s{S_T}, s{S_W}, 3072")
        a(f"v_lshlrev_b32 v{VST}, 4, v{L}"); a(f"v_add_u32 v{VST}, s{S_T}, v{VST}")
        a(f"s_mov_b32 s62, s{S_PART}")
        a(f"s_mov_b32 s{S_SLOT}, 0")
        a(f"s_mov_b32 s60, {(-4*32768) & 0xffffffff}"); a("s_mov_b32 s61, 32768")
        a("s_waitcnt lgkmcnt(0)")
        st.q = []
        ACC = V_O
        PK = V_O + 24
        for r in range(0): pass
        def order(n):
            if n == 0: return [(tl, oh, ks) for oh in range(2) for tl in range(2) for ks in range(4)]
            return [(tl, oh, ks) for tl in range(2) for oh in range(2) for ks in range(4)]
        seq = [(n,) + f for n in range(10) for f in order(n)]
        def rd(i):
            n, tl, oh, ks = seq[i]
            fr = V_FR + 4 * (i % 4)
            ad = [V_A0, V_A1, V_A2, V_A3][oh * 2 + tl]
            return [('R', f"ds_read_b64_tr_b16 {vr(fr,2)}, v{ad} offset:{ks*4096}", (i, 0)),
                    ('R', f"ds_read_b64_tr_b16 {vr(fr+2,2)}, v{ad} offset:{ks*4096+2048}", i)]
        def cvts(tl):
            o = []
            for qt in range(3):
                s = ACC + 12 * tl + 4 * qt
                for h in range(2): o.append(f"v_cvt_pk_bf16_f32 v{PK + qt*4 + tl*2 + h}, v{s+2*h}, v{s+2*h+1}")
            return o
        def stores():
            return [f"buffer_store_dwordx4 {vr(PK+4*qt)}, v{VST}, s[{S_WS}:{S_WS+3}], s62 offen offset:{qt*1024}{self.spol}" for qt in range(3)] + \
                   ["s_add_u32 s62, s62, 12288"]
        pro = [('X', "s_barrier")]
        for i in range(4): pro += rd(i)
        self.emit(st.run(pro))
        self.stamp(3)
        if self.stamps: st.q = []
        steps = []
        for n in range(9):
            ops = []; pend = []
            extra = {}
            if n == 0:
                xr = [('R', f"ds_read_b128 {vr(BX + 4*j)}, v{V_T1} offset:{j*1024}", ('BX', j)) for j in range(12)]
                for j in range(12): extra.setdefault(j // 2, []).append(xr[j])
                ca = cvts(0)
                for j in range(6): extra.setdefault(13 + j // 2, []).append(('X', ca[j]))
            else:
                cb = cvts(1); ca = cvts(0); ss = stores()
                for j in range(6): extra.setdefault(1 + j // 2, []).append(('X', cb[j]))
                for j in range(4): extra.setdefault(4 + j, []).append(('X', ss[j]))
                for j in range(6): extra.setdefault(9 + j // 2, []).append(('X', ca[j]))
            for f in range(16):
                i = n * 16 + f
                _, tl, oh, ks = seq[i]
                fr = V_FR + 4 * (i % 4)
                first = (oh == 0 and ks == 0)
                for qt in range(3):
                    d = ACC + 12 * tl + 4 * qt
                    B = (BO if oh == 0 else BX) + (ks * 3 + qt) * 4
                    needs = [i] + ([('BX', ks * 3 + qt)] if oh == 1 else [])
                    ops.append(('M', f"{MF} {vr(d)}, {vr(fr)}, {vr(B)}, {'0' if first else vr(d)}", needs))
                    if qt == 0 and pend: ops.append(pend.pop(0))
                    if qt == 1:
                        ops += extra.get(f, [])
                        if f == 11: ops += [('X', s) for s in self.ring_adv(5, 0, 0)]
                        if f == 12:
                            ops.append(('X', "s_barrier"))
                            ops += [('X', f"v_add_u32 v{r}, s{S_D0}, v{r}") for r in (V_A0, V_A1, V_A2, V_A3)]
                    if qt == 2:
                        nr = rd(i + 4)
                        ops.append(nr[0])
                        if f == 15: ops.append(nr[1])
                        else: pend.append(nr[1])
            steps.append(st.run(ops))
        self.emit(steps[0])
        self.roll(steps, 1, 1, 8, "L_p3", allow_first=True)
        a("s_nop 7"); a("s_nop 1")
        self.emit(cvts(1)); self.emit(stores())
        a("s_waitcnt lgkmcnt(0)")

    def write_stamps(self, n):
        a = self.a
        if not self.stamps: return
        a("s_waitcnt vmcnt(0)")
        self.stamp(n - 1)
        a(f"s_cmp_lg_u32 s{S_W}, 0")
        a("s_cbranch_scc1 L_done")
        a(f"s_mul_i32 s{S_T}, s2, {8*n}")
        a(f"s_add_u32 s{S_T}, s{S_T}, {STAMP_OFF}")
        a(f"v_mov_b32 v1, s{S_T}")
        a("s_mov_b64 exec, 1")
        for j in range(n):
            a(f"v_mov_b32 v4, s{S_ST+2*j}"); a(f"v_mov_b32 v5, s{S_ST+2*j+1}")
            a(f"buffer_store_dwordx2 v[4:5], v1, s[{S_WS}:{S_WS+3}], 0 offen offset:{8*j}")
            a("s_nop 1")

    def reducer(self, lab):
        a = self.a
        kstart(a, lab)
        a("s_cmp_ge_u32 s2, 256")
        a("s_cbranch_scc1 L2_done")
        a("s_load_dwordx2 s[4:5], s[0:1], 40")
        a("s_load_dwordx2 s[6:7], s[0:1], 56")
        a("s_lshr_b32 s8, s2, 4"); a("s_and_b32 s9, s2, 15")
        a("v_cmp_gt_u32 vcc, 432, v0")
        a("s_and_b64 exec, exec, vcc")
        a("s_cbranch_execz L2_done")
        a("s_mul_i32 s10, s9, 432")
        a("v_add_u32 v1, s10, v0")
        a("v_lshlrev_b32 v2, 4, v1")
        a(f"s_mul_i32 s11, s8, {16*PART_BYTES}")
        a("s_waitcnt lgkmcnt(0)")
        srd(a, 12, 6, 0x10000000)
        srd(a, 16, 4, 16*96*576*2)
        for p in range(16):
            a(f"buffer_load_dwordx4 {vr(16+4*p)}, v2, s[12:15], s11 offen")
            if p < 15: a(f"s_add_u32 s11, s11, {PART_BYTES}")
        a("v_lshrrev_b32 v3, 6, v1")
        a("v_mul_u32_u24 v4, 0x5556, v3"); a("v_lshrrev_b32 v4, 16, v4")
        a("v_mul_u32_u24 v5, 3, v4"); a("v_sub_u32 v5, v3, v5")
        a("v_and_b32 v6, 1, v4"); a("v_mul_u32_u24 v6, 48, v6")
        a("v_lshl_add_u32 v6, v5, 4, v6")
        a("v_and_b32 v7, 15, v1"); a("v_add_u32 v6, v6, v7")
        a("v_mul_u32_u24 v6, 1152, v6")
        a("v_lshrrev_b32 v7, 1, v4"); a("v_lshl_add_u32 v6, v7, 6, v6")
        a("v_bfe_u32 v7, v1, 4, 2"); a("v_lshl_add_u32 v6, v7, 3, v6")
        a("s_mul_i32 s10, s8, 110592")
        a("s_mov_b32 s20, 0xffff0000")
        for p in range(16):
            a(f"s_waitcnt vmcnt({15-p})")
            for r in range(4):
                src = 16 + 4 * p + r
                if p == 0:
                    a(f"v_lshlrev_b32 v{8+2*r}, 16, v{src}"); a(f"v_and_b32 v{9+2*r}, s20, v{src}")
                else:
                    a(f"v_lshlrev_b32 v2, 16, v{src}"); a(f"v_and_b32 v3, s20, v{src}")
                    a(f"v_add_f32 v{8+2*r}, v{8+2*r}, v2"); a(f"v_add_f32 v{9+2*r}, v{9+2*r}, v3")
        for r in range(4): a(f"v_cvt_pk_bf16_f32 v{16+r}, v{8+2*r}, v{9+2*r}")
        a("buffer_store_dwordx2 v[16:17], v6, s[16:19], s10 offen")
        a("buffer_store_dwordx2 v[18:19], v6, s[16:19], s10 offen offset:32")
        a("L2_done:")
        a("s_endpgm")

    def build(self):
        a = self.a
        k1 = "gqa_main_kernel"; k2 = "gqa_reduce_kernel"
        header(a, [(k1, 256, 512, 160 * 1024), (k2, 256, 448, 0)])
        kstart(a, k1)
        self.prologue()
        st = Stream()
        self.phase1(st)
        self.phase2(st)
        self.phase3(st)
        self.write_stamps(5)
        a("s_branch L_done")
        self.slowpath()
        self.loader()
        a("L_done:")
        a("s_endpgm")
        self.reducer(k2)
        kdesc(a, k1)
        kdesc(a, k2, vgpr=80, accum=80)
        return a.text()

if __name__ == "__main__":
    import argparse
    ap = argparse.ArgumentParser()
    ap.add_argument("-o", default="v1.s")
    ap.add_argument("--stamps", action="store_true")
    ap.add_argument("--slow", action="store_true")
    ap.add_argument("--kvpol", default=" nt")
    ap.add_argument("--spol", default="")
    x = ap.parse_args()
    g = Gen(stamps=x.stamps, kvpol=x.kvpol, spol=x.spol, force_slow=x.slow)
    open(x.o, "w").write(g.build())
```

```python
import sys, struct
from asmlib import *

def f32hex(x):
    return "0x%08x" % struct.unpack("<I", struct.pack("<f", x))[0]

MF = "v_mfma_f32_16x16x32_bf16"
def vr(b, n=4): return f"v[{b}:{b+n-1}]"

class Stream:
    def __init__(self):
        self.q = []
    def run(self, ops):
        out = []
        for op in ops:
            k = op[0]
            if k == 'R':
                out.append(op[1]); self.q.append(op[2])
            elif k in ('M', 'W'):
                needs = op[2]
                idx = -1
                for i, t in enumerate(self.q):
                    if t in needs: idx = i
                if idx >= 0:
                    n = len(self.q) - 1 - idx
                    assert n <= 15
                    out.append(f"s_waitcnt lgkmcnt({n})")
                    self.q = self.q[idx+1:]
                if op[1]: out.append(op[1])
            elif k == 'Z':
                out.append("s_waitcnt lgkmcnt(0)"); self.q = []
            else:
                out.append(op[1])
        return out

V_O = 0
V_Q = 96
V_S = 144
V_P = 192
V_L = 216
V_ONE = 228
V_FR = 232
V_A0, V_A1, V_A2, V_A3 = 248, 249, 250, 251
V_LANE = 252
V_T0, V_T1, V_T2 = 253, 254, 255

S_X, S_K, S_V, S_WQ, S_WO, S_WS, S_OUT = 20, 24, 28, 32, 36, 40, 44
S_B, S_H, S_W = 48, 49, 50
S_CNT, S_SLOT, S_D0, S_D1 = 51, 52, 53, 54
S_SC = 56
S_T = 58
S_KVOFF, S_XOFF, S_WQOFF, S_WOOFF, S_LW, S_PART = 64, 65, 66, 67, 68, 69
S_ST = 72

L_X = 96 * 1024
L_EX = 96 * 1024
PART_BYTES = 110592
STAMP_OFF = 0x8000000
FLAG_OFF = 0x4000000
S_DBG = 96

class Gen:
    def __init__(self, stamps=False, kvpol=" nt", spol=" sc0 sc1", force_slow=False):
        self.a = Asm(); self.stamps = stamps; self.kvpol = kvpol; self.spol = spol
        self.force_slow = force_slow
        self.nst = 0
    def stamp(self, i):
        if self.stamps:
            self.a(f"s_memrealtime s[{S_ST+2*i}:{S_ST+2*i+1}]")
            self.a("s_waitcnt lgkmcnt(0)")
    def emit(self, lines):
        for l in lines: self.a(l)

    def prologue(self):
        a = self.a
        a("s_cmp_ge_u32 s2, 256")
        a("s_cbranch_scc1 L_done")
        a("s_load_dwordx16 s[4:19], s[0:1], 0")
        if self.stamps: a(f"s_memrealtime s[{S_ST}:{S_ST+1}]")
        a(f"v_lshrrev_b32 v1, 6, v0")
        a(f"v_and_b32 v{V_LANE}, 63, v0")
        a(f"s_and_b32 s{S_T}, s2, 1"); a(f"s_lshl_b32 s{S_T}, s{S_T}, 3")
        a(f"s_bfe_u32 s{S_T+1}, s2, 0x30003"); a(f"s_add_u32 s{S_B}, s{S_T}, s{S_T+1}")
        a(f"v_readfirstlane_b32 s{S_W}, v1")
        a(f"s_bfe_u32 s{S_T}, s2, 0x20001"); a(f"s_lshl_b32 s{S_T}, s{S_T}, 2")
        a(f"s_lshr_b32 s{S_T+1}, s2, 6"); a(f"s_add_u32 s{S_H}, s{S_T}, s{S_T+1}")
        a(f"s_lshl_b32 s{S_T}, s{S_B}, 4"); a(f"s_add_u32 s{S_T}, s{S_T}, s{S_H}")
        a(f"s_lshl_b32 s{S_KVOFF}, s{S_T}, 17")
        a(f"s_mul_i32 s{S_PART}, s{S_T}, {PART_BYTES}")
        a(f"s_mul_i32 s{S_XOFF}, s{S_B}, 110592")
        a(f"s_lshl_b32 s{S_WQOFF}, s{S_H}, 9")
        a(f"s_mul_i32 s{S_WOOFF}, s{S_H}, {256*1152}")
        a("s_waitcnt lgkmcnt(0)")
        srd(a, S_X, 4, 16*96*576*2)
        srd(a, S_WQ, 10, 576*4096*2)
        srd(a, S_K, 6, 16*16*512*128*2)
        srd(a, S_V, 8, 16*16*512*128*2)
        srd(a, S_WO, 12, 4096*576*2)
        srd(a, S_WS, 18, 0x10000000)
        srd(a, S_OUT, 14, 16*96*576*2)
        srd(a, S_DBG, 16, 256)
        a(f"s_cmp_ge_u32 s{S_W}, 4")
        a("s_cbranch_scc1 L_loader")

    def loader(self):
        a = self.a
        a("L_loader:")
        L = V_LANE
        vWq, vX, vK, vV, vWo, t0, t1, t2 = 1, 2, 3, 4, 5, 6, 7, 8
        a(f"s_sub_u32 s{S_LW}, s{S_W}, 4")
        lw = S_LW
        a(f"v_and_b32 v{t0}, 3, v{L}")
        a(f"v_bfe_u32 v{t1}, v{L}, 2, 2")
        a(f"v_lshrrev_b32 v{t2}, 4, v{L}")
        a(f"s_and_b32 s{S_T}, s{lw}, 1")
        a(f"v_xor_b32 v{vWq}, s{S_T}, v{t0}")
        a(f"v_lshlrev_b32 v{vWq}, 4, v{vWq}")
        a(f"v_lshl_add_u32 v{vWq}, v{t2}, 6, v{vWq}")
        a(f"v_lshl_add_u32 v{vWq}, v{t1}, 13, v{vWq}")
        a(f"s_lshl_b32 s{S_T+1}, s{lw}, 16")
        a(f"v_add_u32 v{vWq}, s{S_T+1}, v{vWq}")
        a(f"v_and_b32 v9, 1, v{t2}")
        a(f"s_lshl_b32 s{S_T+1}, s{S_T}, 1")
        a(f"v_add_u32 v9, s{S_T+1}, v9")
        a(f"v_sub_u32 v9, 0, v9")
        a(f"v_and_b32 v9, 3, v9")
        a(f"v_xor_b32 v9, v9, v{t0}")
        a(f"v_lshlrev_b32 v9, 4, v9")
        a(f"v_lshrrev_b32 v10, 5, v{L}")
        a(f"v_lshl_add_u32 v9, v10, 6, v9")
        a(f"v_bfe_u32 v11, v{L}, 2, 3")
        a(f"s_lshl_b32 s{S_T+1}, s{lw}, 3")
        a(f"v_add_u32 v11, s{S_T+1}, v11")
        a(f"s_movk_i32 s{S_T+2}, 1152")
        a(f"v_mad_u32_u24 v{vX}, v11, s{S_T+2}, v9")
        a(f"v_and_b32 v9, 1, v{t2}")
        a(f"v_lshlrev_b32 v9, 1, v9")
        a(f"v_xor_b32 v9, v9, v{t0}")
        a(f"v_lshlrev_b32 v9, 4, v9")
        a(f"v_lshl_add_u32 v9, v10, 6, v9")
        a(f"v_mad_u32_u24 v{vWo}, v11, s{S_T+2}, v9")
        a(f"s_sub_u32 s{S_T+1}, 0, s{lw}"); a(f"s_and_b32 s{S_T+1}, s{S_T+1}, 3")
        a(f"v_lshlrev_b32 v9, 8, v{t1}")
        a(f"v_lshl_add_u32 v9, v{t2}, 6, v9")
        a(f"s_lshl_b32 s{S_T+2}, s{lw}, 10")
        a(f"v_add_u32 v9, s{S_T+2}, v9")
        a(f"v_xor_b32 v10, s{S_T+1}, v{t0}")
        a(f"v_lshl_add_u32 v{vK}, v10, 4, v9")
        a(f"s_lshl_b32 s{S_T+1}, s{S_T}, 1")
        a(f"v_xor_b32 v10, s{S_T+1}, v{t0}")
        a(f"v_lshl_add_u32 v{vV}, v10, 4, v9")
        a(f"s_lshl_b32 s70, s{lw}, 10"); a(f"s_lshl_b32 s71, s{lw}, 12")

        issued = []
        def piece(item, ldsbase_s, ldsimm, voff, srd_, sbase, gimm, pol):
            a(f"s_add_u32 m0, s{ldsbase_s}, {ldsimm}")
            a(f"s_add_u32 s{S_T}, s{sbase}, {gimm}")
            a(f"buffer_load_dwordx4 v{voff}, s[{srd_}:{srd_+3}], s{S_T} offen{pol} lds")
            issued.append(item)
        def load(item):
            kind, t = item
            if kind == 'wq':
                for p in range(4):
                    piece(item, 71, (t % 6) * 16384 + p * 1024, vWq, S_WQ, S_WQOFF, t * 32 * 8192 + (p >> 1) * 32768 + (p & 1) * 256, "")
            elif kind == 'x':
                for p in range(3):
                    piece(item, 70, L_X + (t % 3) * 12288 + p * 4096, vX, S_X, S_XOFF, t * 128 + p * 32 * 1152, "")
            elif kind == 'kv':
                if t < 16:
                    for p in range(2):
                        piece(item, 70, (t % 6) * 16384 + p * 4096, vK, S_K, S_KVOFF, t * 8192 + p * 4096, self.kvpol)
                if t >= 2:
                    for p in range(2):
                        piece(item, 70, (t % 6) * 16384 + 8192 + p * 4096, vV, S_V, S_KVOFF, (t - 2) * 8192 + p * 4096, self.kvpol)
            elif kind == 'wo':
                nb, hd = t >> 1, t & 1
                for p in range(4):
                    piece(item, 70, (nb % 5) * 32768 + hd * 16384 + p * 4096, vWo, S_WO, S_WOOFF, (hd * 128 + p * 32) * 1152 + nb * 128, "")
        bars = []
        for t in range(18): bars.append((f"B{t}", [('wq', t)] + ([('x', t // 2)] if t % 2 == 0 else [])))
        bars.append(("B18", []))
        for t in range(18): bars.append((f"C{t}", [('kv', t)]))
        for n in range(9): bars.append((f"D{n}", [('wo', 2 * n), ('wo', 2 * n + 1)]))
        bars.append(("D9", []))
        bi = {n: i for i, (n, _) in enumerate(bars)}
        order = []
        for t in range(18):
            if t % 2 == 0:
                c = t // 2
                order.append((('x', c), -1 if c < 3 else bi[f"B{2*(c-3)+3}"]))
            order.append((('wq', t), -1 if t < 6 else bi[f"B{t-4}"]))
        for t in range(18):
            if t < 5: rel = bi[f"B{t+14}"]
            elif t == 5: rel = bi["C0"]
            else: rel = bi[f"C{t-4}"]
            order.append((('kv', t), rel))
        for h in range(18):
            nb, hd = h >> 1, h & 1
            if nb < 2: rel = bi[f"C{12 + h + 2}"]
            elif nb == 2: rel = bi["D0"]
            elif nb < 5: rel = bi["D1"]
            else: rel = bi[f"D{nb-3}"]
            order.append((('wo', h), rel))
        pos = 0
        def issue_ready(cur):
            nonlocal pos
            while pos < len(order) and order[pos][1] <= cur:
                load(order[pos][0]); pos += 1
        issue_ready(-1)
        lastwait = None
        for i, (name, needs) in enumerate(bars):
            if needs:
                idx = max(j for j, it in enumerate(issued) if it in needs)
                for nd in needs: assert nd in issued, (name, nd)
                n = len(issued) - 1 - idx
                assert n <= 63
                a(f"s_waitcnt vmcnt({n})")
            a("s_barrier")
            if self.stamps and name in ("B0", "C0", "D0"):
                pass
            issue_ready(i)
        assert pos == len(order)
        a(f"s_cmp_lg_u32 s{S_W}, 4")
        a("s_cbranch_scc1 L_fin")
        a(f"s_lshl_b32 s{S_T+1}, s{S_B}, 4")
        a("v_mov_b32 v1, 0")
        a(f"s_mov_b32 s{S_CNT}, 0")
        a("L_poll0:")
        a(f"buffer_load_dword v2, v1, s[{S_DBG}:{S_DBG+3}], s{S_T+1} offen sc0 sc1")
        a("s_waitcnt vmcnt(0)")
        a(f"v_readfirstlane_b32 s{S_T}, v2")
        a(f"s_add_u32 s{S_CNT}, s{S_CNT}, 1")
        a(f"s_cmp_ge_u32 s{S_T}, 16")
        a("s_cbranch_scc1 L_poll0_ok")
        a(f"s_cmp_lt_u32 s{S_CNT}, 0x100000")
        a("s_cbranch_scc1 L_poll0")
        a("L_poll0_ok:")
        a(f"s_lshr_b32 s{S_T}, s{S_KVOFF}, 10")
        a(f"s_add_u32 s{S_T}, s{S_T}, {FLAG_OFF}")
        a(f"s_lshl_b32 s{S_T+1}, s{S_B}, 11")
        a(f"s_add_u32 s{S_T+1}, s{S_T+1}, {FLAG_OFF}")
        a(f"v_and_b32 v3, 15, v{V_LANE}"); a("v_lshlrev_b32 v3, 7, v3")
        a("v_mov_b32 v2, 1")
        a("s_barrier")
        a("s_mov_b64 exec, 1")
        a(f"buffer_store_dword v2, v1, s[{S_WS}:{S_WS+3}], s{S_T} offen sc0 sc1")
        a("s_mov_b64 exec, 0xffff")
        a(f"s_mov_b32 s{S_CNT}, 0")
        a("L_poll1:")
        a(f"buffer_load_dword v4, v3, s[{S_WS}:{S_WS+3}], s{S_T+1} offen sc0 sc1")
        a("s_waitcnt vmcnt(0)")
        a("v_cmp_ne_u32 vcc, 1, v4")
        a(f"s_add_u32 s{S_CNT}, s{S_CNT}, 1")
        a("s_cbranch_vccz L_poll1_ok")
        a(f"s_cmp_lt_u32 s{S_CNT}, 0x100000")
        a("s_cbranch_scc1 L_poll1")
        a("L_poll1_ok:")
        a("s_mov_b64 exec, -1")
        a("s_branch L_red")
        self.nbars = len(bars)

    def ring_adv(self, nslots, dpos, dneg, dpos2=None, dneg2=None):
        o = [f"s_add_u32 s{S_SLOT}, s{S_SLOT}, 1",
             f"s_cmp_eq_u32 s{S_SLOT}, {nslots}",
             f"s_cselect_b32 s{S_SLOT}, 0, s{S_SLOT}",
             f"s_cselect_b32 s{S_D0}, s60, s61"]
        if dpos2 is not None: o.append(f"s_cselect_b32 s{S_D1}, s62, s63")
        return o

    def phase1(self, st):
        a = self.a
        L = V_LANE
        a(f"s_lshr_b32 s{S_T}, s{S_W}, 1")
        a(f"s_and_b32 s{S_T+1}, s{S_W}, 1")
        a(f"v_lshrrev_b32 v{V_T0}, 4, v{L}")
        a(f"v_and_b32 v{V_T1}, 3, v{L}")
        a(f"v_and_b32 v{V_T2}, 1, v{V_T0}")
        a(f"v_xor_b32 v{V_A0}, v{V_T1}, v{V_T2}")
        a(f"v_lshlrev_b32 v{V_A0}, 4, v{V_A0}")
        a(f"v_lshl_add_u32 v{V_A0}, v{V_T0}, 12, v{V_A0}")
        a(f"v_and_b32 v{V_A1}, 1, v{V_T1}")
        a(f"v_lshl_add_u32 v{V_A0}, v{V_A1}, 3, v{V_A0}")
        a(f"v_bfe_u32 v{V_A1}, v{L}, 2, 2")
        a(f"v_lshl_add_u32 v{V_A0}, v{V_A1}, 6, v{V_A0}")
        a(f"s_lshl_b32 s{S_T+2}, s{S_T}, 10")
        a(f"v_add_u32 v{V_A0}, s{S_T+2}, v{V_A0}")
        a(f"v_xor_b32 v{V_A1}, 8, v{V_A0}")
        a(f"v_bfe_u32 v{V_A2}, v{L}, 2, 2")
        a(f"v_sub_u32 v{V_A2}, 0, v{V_A2}")
        a(f"v_and_b32 v{V_A2}, 3, v{V_A2}")
        a(f"v_xor_b32 v{V_A2}, v{V_A2}, v{V_T0}")
        a(f"v_lshlrev_b32 v{V_A2}, 4, v{V_A2}")
        a(f"v_mov_b32 v{V_A3}, v{V_A2}")
        a(f"v_and_b32 v{V_T1}, 7, v{L}")
        a(f"v_lshl_add_u32 v{V_A2}, v{V_T1}, 6, v{V_A2}")
        a(f"v_bfe_u32 v{V_T1}, v{L}, 3, 1")
        a(f"v_lshl_add_u32 v{V_A2}, v{V_T1}, 10, v{V_A2}")
        a(f"s_mul_i32 s{S_T+2}, s{S_T+1}, 6144")
        a(f"s_add_u32 s{S_T+2}, s{S_T+2}, {L_X}")
        a(f"v_add_u32 v{V_A2}, s{S_T+2}, v{V_A2}")
        for r in range(96): a(f"v_mov_b32 v{V_O+r}, 0")
        a(f"s_mov_b32 s{S_SLOT}, 0")
        a(f"s_mov_b32 s60, {-65536 & 0xffffffff}"); a("s_mov_b32 s61, 32768")
        a(f"s_mov_b32 s62, {-24576 & 0xffffffff}"); a("s_mov_b32 s63, 12288")
        XB = V_S
        def rdA(t, f):
            dblk, tl = f >> 1, f & 1
            fr = V_FR + 4 * (f % 4)
            ad = V_A0 if tl == 0 else V_A1
            base = (t & 1) * 16384 + dblk * 256
            return [('R', f"ds_read_b64_tr_b16 {vr(fr,2)}, v{ad} offset:{base}", ('A', t, f, 0)),
                    ('R', f"ds_read_b64_tr_b16 {vr(fr+2,2)}, v{ad} offset:{base+2048}", ('A', t, f))]
        def rdX(t, qt):
            return ('R', f"ds_read_b128 {vr(XB + 12*(t&1) + 4*qt)}, v{V_A2} offset:{qt*2048 + (t&1)*512}", ('X', t, qt))
        a(f"s_cmp_lg_u32 s{S_W}, 0")
        a("s_cbranch_scc1 L_nostart")
        a(f"s_lshr_b32 s{S_T}, s{S_KVOFF}, 10")
        a(f"s_add_u32 s{S_T}, s{S_T}, {FLAG_OFF}")
        a(f"s_lshl_b32 s{S_T+1}, s{S_B}, 4")
        a(f"v_mov_b32 v{V_T0}, 0"); a(f"v_mov_b32 v{V_T1}, 1")
        a("s_mov_b64 exec, 1")
        a(f"buffer_store_dword v{V_T0}, v{V_T0}, s[{S_WS}:{S_WS+3}], s{S_T} offen sc0 sc1")
        a("s_waitcnt vmcnt(0)")
        a(f"buffer_atomic_add v{V_T1}, v{V_T0}, s[{S_DBG}:{S_DBG+3}], s{S_T+1} offen sc1")
        a("s_mov_b64 exec, -1")
        a("L_nostart:")
        pro = [('X', "s_barrier")]
        pro += [rdX(0, q) for q in range(3)]
        for f in range(4): pro += rdA(0, f)
        self.emit(st.run(pro))
        self.stamp(1)
        st.q = [] if self.stamps else st.q
        steps = []
        for t in range(18):
            ops = []
            pend = []
            for f in range(8):
                fr = V_FR + 4 * (f % 4)
                for qt in range(3):
                    acc = V_O + (f * 3 + qt) * 4
                    ops.append(('M', f"{MF} {vr(acc)}, {vr(fr)}, {vr(XB + 12*(t&1) + 4*qt)}, {vr(acc)}", [('A', t, f), ('X', t, qt)]))
                    if qt == 0 and pend: ops.append(pend.pop(0))
                    if qt == 1:
                        if f == 2 and (t & 1): ops += [('X', s) for s in self.ring_adv(3, 0, 0, 0, 0)]
                        if f == 3:
                            ops.append(('X', "s_barrier"))
                            if t & 1: ops.append(('X', f"v_add_u32 v{V_A2}, s{S_D1}, v{V_A2}"))
                            ops.append(rdX(t + 1, 0))
                        if f == 4:
                            if t & 1:
                                ops += [('X', f"v_add_u32 v{V_A0}, s{S_D0}, v{V_A0}"), ('X', f"v_add_u32 v{V_A1}, s{S_D0}, v{V_A1}")]
                            ops += [rdX(t + 1, 1), rdX(t + 1, 2)]
                    if qt == 2:
                        nr = rdA(t, f + 4) if f < 4 else rdA(t + 1, f - 4)
                        ops.append(nr[0])
                        if f == 7: ops.append(nr[1])
                        else: pend.append(nr[1])
            steps.append(st.run(ops))
        self.roll(steps, 0, 2, 9, "L_p1", allow_first=True)
        a("s_nop 7")
        c = f32hex(128 ** -0.5 * 1.4426950408889634)
        a(f"s_mov_b32 s{S_SC}, {c}"); a(f"s_mov_b32 s{S_SC+1}, {c}")
        a("s_mov_b32 vcc_lo, 0xffff0000"); a("s_mov_b32 vcc_hi, 0xffff0000")
        tmp = V_P
        k = 0
        for s in range(4):
            for qt in range(3):
                t0 = V_O + ((2 * s) * 3 + qt) * 4; t1 = V_O + ((2 * s + 1) * 3 + qt) * 4
                for b in (t0, t0 + 2, t1, t1 + 2):
                    a(f"v_pk_mul_f32 {vr(b,2)}, {vr(b,2)}, s[{S_SC}:{S_SC+1}]")
                T = tmp + 4 * (k % 4); k += 1
                a(f"v_cvt_pk_bf16_f32 v{T}, v{t0}, v{t0+1}"); a(f"v_cvt_pk_bf16_f32 v{T+1}, v{t0+2}, v{t0+3}")
                a(f"v_cvt_pk_bf16_f32 v{T+2}, v{t1}, v{t1+1}"); a(f"v_cvt_pk_bf16_f32 v{T+3}, v{t1+2}, v{t1+3}")
                q = V_Q + (qt * 4 + s) * 4
                a(f"v_cndmask_b32 v{q}, v{T}, v{T+2}, vcc"); a(f"v_cndmask_b32 v{q+1}, v{T+1}, v{T+3}, vcc")
                a(f"v_cndmask_b32 v{q+2}, v{T+2}, v{T}, vcc"); a(f"v_cndmask_b32 v{q+3}, v{T+3}, v{T+1}, vcc")

    def roll(self, steps, start, period, trips, label, allow_first=False):
        a = self.a
        body = sum(steps[start + period: start + 2 * period], []) if trips > 1 else sum(steps[start:start + period], [])
        for k in range(trips):
            b = sum(steps[start + k * period: start + (k + 1) * period], [])
            if b != body:
                if k == 0 and allow_first:
                    nb = [x for x in body if not x.startswith("s_waitcnt")]
                    nf = [x for x in b if not x.startswith("s_waitcnt")]
                    assert nb == nf, label
                    self.check_waits(b, body, label)
                else:
                    raise AssertionError(f"loop {label} trip {k} differs")
        a(f"s_mov_b32 s{S_CNT}, {trips}")
        a(f"{label}:")
        self.emit(body)
        a(f"s_sub_u32 s{S_CNT}, s{S_CNT}, 1")
        a(f"s_cmp_lg_u32 s{S_CNT}, 0")
        a(f"s_cbranch_scc1 {label}")
    def check_waits(self, first, body, label):
        def waits(l):
            d = {}; n = 0
            for x in l:
                if x.startswith("s_waitcnt"): d[n] = int(x.split("(")[1][:-1])
                else: n += 1
            return d
        wf, wb = waits(first), waits(body)
        for p, v in wf.items():
            assert p in wb and wb[p] <= v, (label, p, v, wb.get(p))

    def kv_addrs(self, base_imm):
        a = self.a; L = V_LANE
        a(f"v_lshrrev_b32 v{V_T0}, 4, v{L}")
        a(f"v_bfe_u32 v{V_T1}, v{L}, 2, 2")
        a(f"v_sub_u32 v{V_A3}, 0, v{V_T1}")
        a(f"v_and_b32 v{V_A3}, 3, v{V_A3}")
        a(f"v_xor_b32 v{V_A3}, v{V_A3}, v{V_T0}")
        a(f"v_lshlrev_b32 v{V_A3}, 4, v{V_A3}")
        a(f"v_lshl_add_u32 v{V_A3}, v{V_T1}, 10, v{V_A3}")
        a(f"v_and_b32 v{V_T2}, 3, v{L}")
        a(f"v_lshl_add_u32 v{V_A3}, v{V_T2}, 6, v{V_A3}")
        a(f"v_lshlrev_b32 v{V_A0}, 3, v{V_T2}")
        a(f"v_lshl_add_u32 v{V_A0}, v{V_T1}, 6, v{V_A0}")
        a(f"v_lshl_add_u32 v{V_A0}, v{V_T0}, 10, v{V_A0}")
        a(f"v_and_b32 v{V_T0}, 1, v{V_T0}")
        a(f"v_lshl_add_u32 v{V_A0}, v{V_T0}, 5, v{V_A0}")
        a(f"v_xor_b32 v{V_A1}, 32, v{V_A0}")

    def phase2(self, st):
        a = self.a
        self.kv_addrs(0)
        for r in range(4): a(f"v_mov_b32 v{V_ONE+r}, 0x3f803f80")
        a(f"s_mov_b32 s{S_SLOT}, 0")
        def frags(t):
            fl = []
            if t < 16: fl += [('K', i) for i in range(8)]
            if 2 <= t < 18: fl += [('V', i) for i in range(8)]
            return fl
        seq = [(t, k, i) for t in range(18) for (k, i) in frags(t)]
        gidx = {x: n for n, x in enumerate(seq)}
        def rd(n):
            t, k, i = seq[n]
            fr = V_FR + 4 * (n % 4)
            base = (t & 1) * 16384
            if k == 'K':
                kt, s = i >> 2, i & 3
                return [('R', f"ds_read_b128 {vr(fr)}, v{V_A3} offset:{base + kt*4096 + s*256}", n)]
            ad = V_A0 if (i & 1) == 0 else V_A1
            o = base + 8192 + (i >> 1) * 256
            return [('R', f"ds_read_b64_tr_b16 {vr(fr,2)}, v{ad} offset:{o}", (n, 0)),
                    ('R', f"ds_read_b64_tr_b16 {vr(fr+2,2)}, v{ad} offset:{o+4096}", n)]
        pro = [('X', "s_barrier")]
        for n in range(4): pro += rd(n)
        self.emit(st.run(pro))
        self.stamp(2)
        if self.stamps: st.q = []
        steps = []
        zero = [f"v_mov_b32 v{V_O+r}, 0" for r in range(96)] + [f"v_mov_b32 v{V_L+r}, 0" for r in range(12)]
        for t in range(18):
            val = []
            if 1 <= t <= 16:
                sb = V_S + 24 * ((t - 1) & 1); pb = V_P + 12 * ((t - 1) & 1)
                ex = []; cv = []
                for kt in range(2):
                    for qt in range(3):
                        s0 = sb + (kt * 3 + qt) * 4
                        for h in range(2):
                            ex.append([f"v_exp_f32 v{s0+2*h}, v{s0+2*h}", f"v_exp_f32 v{s0+2*h+1}, v{s0+2*h+1}"])
                            cv.append(f"v_cvt_pk_bf16_f32 v{pb + qt*4 + kt*2 + h}, v{s0+2*h}, v{s0+2*h+1}")
                for i in range(12):
                    val += [(8, ex[i][0]), (8, ex[i][1])]
                    if i >= 1: val.append((4, cv[i - 1]))
                val.append((0, "s_nop 0"))
                val.append((4, cv[11]))
            if t == 0: val += [(4, z) for z in zero[:60]]
            if t == 1: val += [(4, z) for z in zero[60:]]
            fl = frags(t)
            groups = [(t, k, i) for (k, i) in fl]
            ops = []
            gaps = []
            pend = []
            for g in groups:
                n = gidx[g]; _, k, i = g
                fr = V_FR + 4 * (n % 4)
                for qt in range(3):
                    if k == 'K':
                        kt, s = i >> 2, i & 3
                        d = V_S + 24 * (t & 1) + (kt * 3 + qt) * 4
                        m = ('M', f"{MF} {vr(d)}, {vr(fr)}, {vr(V_Q + (qt*4+s)*4)}, {'0' if s == 0 else vr(d)}", [n])
                    else:
                        d = V_O + (i * 3 + qt) * 4
                        m = ('M', f"{MF} {vr(d)}, {vr(fr)}, {vr(V_P + 12*(t&1) + qt*4)}, {vr(d)}", [n])
                    fx = []; cost = 0
                    if qt == 0 and pend:
                        fx.append(pend.pop(0)); cost += 4
                    nn = n + 4
                    if qt == 1 and nn < len(seq) and seq[nn][0] != t and seq[nn - 1][0] == t:
                        fx.append(('X', "s_barrier")); cost += 4
                        if t & 1:
                            fx += [('X', f"v_add_u32 v{r}, s{S_D0}, v{r}") for r in (V_A3, V_A0, V_A1)]; cost += 12
                    if qt == 1 and (t & 1) and nn + 1 < len(seq) and seq[nn + 1][0] != t and seq[nn][0] == t:
                        fx += [('X', s) for s in self.ring_adv(3, 0, 0)]; cost += 8
                    if qt == 2:
                        cost += 4
                        if nn < len(seq):
                            nr = rd(nn)
                            fx.append(nr[0]); cost += 4
                            if len(nr) > 1:
                                if g == groups[-1] : fx.append(nr[1]); cost += 4
                                else: pend.append(nr[1])
                    gaps.append([m, fx, cost])
            if t >= 2:
                for qt in range(3):
                    d = V_L + 4 * qt
                    gaps.append([('M', f"{MF} {vr(d)}, {vr(V_ONE)}, {vr(V_P + 12*(t&1) + qt*4)}, {vr(d)}", []), [], 0])
            tot_val = sum(c for c, _ in val)
            free = [max(0, 8 - g[2]) for g in gaps]
            tot_free = sum(free)
            scale = max(1.0, tot_val / tot_free) if tot_free else 1
            budget = 0.0; vi = 0
            for gi, (m, fx, cost) in enumerate(gaps):
                ops.append(m); ops += fx
                budget += free[gi] * scale
                while vi < len(val) and budget >= val[vi][0] - 1e-6:
                    budget -= val[vi][0]; ops.append(('X', val[vi][1])); vi += 1
            while vi < len(val):
                ops.append(('X', val[vi][1])); vi += 1
            steps.append(st.run(ops))
        self.emit(steps[0]); self.emit(steps[1])
        self.roll(steps, 2, 2, 6, "L_p2", allow_first=True)
        for t in (14, 15, 16, 17):
            if t >= 16: a("s_nop 1")
            self.emit(steps[t])

    def slowpath(self):
        a = self.a; L = V_LANE
        a("L_slow:")
        M = V_P + 12
        KO = V_P + 16
        VO0 = V_P + 17
        VO1 = V_P + 18
        PM = V_P + 19
        a(f"v_and_b32 v{V_T0}, 15, v{L}"); a(f"v_lshrrev_b32 v{V_T1}, 4, v{L}")
        a(f"v_lshlrev_b32 v{KO}, 8, v{V_T0}"); a(f"v_lshl_add_u32 v{KO}, v{V_T1}, 4, v{KO}")
        a(f"v_bfe_u32 v{V_T0}, v{L}, 2, 2"); a(f"v_lshlrev_b32 v{VO0}, 8, v{V_T0}")
        a(f"v_lshl_add_u32 v{VO0}, v{V_T1}, 6, v{VO0}")
        a(f"v_and_b32 v{V_T0}, 3, v{L}"); a(f"v_lshl_add_u32 v{VO0}, v{V_T0}, 4, v{VO0}")
        a(f"v_xor_b32 v{VO1}, 32, v{VO0}")
        self.kv_addrs(0)
        a(f"s_mul_i32 s{S_D0}, s{S_W}, 12288"); a(f"s_add_u32 s{S_D0}, s{S_D0}, {L_EX}")
        a(f"v_add_u32 v{V_A0}, s{S_D0}, v{V_A0}"); a(f"v_add_u32 v{V_A1}, s{S_D0}, v{V_A1}")
        for q in range(3): a(f"v_mov_b32 v{M+q}, 0xff800000")
        for r in range(96): a(f"v_mov_b32 v{V_O+r}, 0")
        for r in range(12): a(f"v_mov_b32 v{V_L+r}, 0")
        def qk(kt):
            a(f"s_add_u32 s{S_T}, s61, {kt*4096}")
            for s in range(4):
                a(f"buffer_load_dwordx4 {vr(V_FR+4*s)}, v{KO}, s[{S_K}:{S_K+3}], s{S_T} offen offset:{s*64}")
            a("s_waitcnt vmcnt(0)")
            for s in range(4):
                for qt in range(3):
                    d = V_S + (kt * 3 + qt) * 4
                    a(f"{MF} {vr(d)}, {vr(V_FR+4*s)}, {vr(V_Q + (qt*4+s)*4)}, {'0' if s == 0 else vr(d)}")
            a("s_nop 7"); a("s_nop 3")
        a(f"s_mov_b32 s61, s{S_KVOFF}"); a(f"s_mov_b32 s{S_CNT}, 32")
        a("L_slow1:")
        qk(0)
        for qt in range(3):
            d = V_S + qt * 4
            a(f"v_max3_f32 v{M+qt}, v{M+qt}, v{d}, v{d+1}"); a(f"v_max3_f32 v{M+qt}, v{M+qt}, v{d+2}, v{d+3}")
        a("s_add_u32 s61, s61, 4096")
        a(f"s_sub_u32 s{S_CNT}, s{S_CNT}, 1"); a(f"s_cmp_lg_u32 s{S_CNT}, 0"); a("s_cbranch_scc1 L_slow1")
        for x in (16, 32):
            a(f"v_xor_b32 v{PM}, {x}, v{L}"); a(f"v_lshlrev_b32 v{PM}, 2, v{PM}")
            for qt in range(3): a(f"ds_bpermute_b32 v{V_S+qt}, v{PM}, v{M+qt}")
            a("s_waitcnt lgkmcnt(0)")
            for qt in range(3): a(f"v_max_f32 v{M+qt}, v{M+qt}, v{V_S+qt}")
        a(f"s_mov_b32 s61, s{S_KVOFF}"); a(f"s_mov_b32 s{S_CNT}, 16")
        a("L_slow2:")
        for p in range(8):
            a(f"s_add_u32 m0, s{S_D0}, {p*1024}")
            a(f"s_add_u32 s{S_T}, s61, {p*1024}")
            a(f"buffer_load_dwordx4 v{VO0 if p % 2 == 0 else VO1}, s[{S_V}:{S_V+3}], s{S_T} offen lds")
        qk(0); qk(1)
        for kt in range(2):
            for qt in range(3):
                d = V_S + (kt * 3 + qt) * 4
                for r in range(4): a(f"v_sub_f32 v{d+r}, v{d+r}, v{M+qt}")
                for r in range(4): a(f"v_exp_f32 v{d+r}, v{d+r}")
                a("s_nop 0")
                for h in range(2): a(f"v_cvt_pk_bf16_f32 v{V_P + qt*4 + kt*2 + h}, v{d+2*h}, v{d+2*h+1}")
        for half in range(2):
            for i4 in range(4):
                i = half * 4 + i4
                ad = V_A0 if (i & 1) == 0 else V_A1
                fr = V_FR + 4 * i4
                a(f"ds_read_b64_tr_b16 {vr(fr,2)}, v{ad} offset:{(i>>1)*256}")
                a(f"ds_read_b64_tr_b16 {vr(fr+2,2)}, v{ad} offset:{(i>>1)*256+4096}")
            a("s_waitcnt lgkmcnt(0)")
            for i4 in range(4):
                i = half * 4 + i4
                for qt in range(3):
                    d = V_O + (i * 3 + qt) * 4
                    a(f"{MF} {vr(d)}, {vr(V_FR+4*i4)}, {vr(V_P + qt*4)}, {vr(d)}")
            a("s_nop 7")
        for qt in range(3):
            d = V_L + 4 * qt
            a(f"{MF} {vr(d)}, {vr(V_ONE)}, {vr(V_P + qt*4)}, {vr(d)}")
        a("s_nop 7")
        a("s_add_u32 s61, s61, 8192")
        a(f"s_sub_u32 s{S_CNT}, s{S_CNT}, 1"); a(f"s_cmp_lg_u32 s{S_CNT}, 0"); a("s_cbranch_scc1 L_slow2")
        a("s_nop 7")
        a("s_branch L_norm")

    def phase3(self, st):
        a = self.a; L = V_LANE
        a("s_nop 7"); a("s_nop 1")
        a(f"v_min3_f32 v{V_T0}, v{V_L}, v{V_L+4}, v{V_L+8}")
        a(f"v_max3_f32 v{V_T1}, v{V_L}, v{V_L+4}, v{V_L+8}")
        a(f"v_add_f32 v{V_T2}, v{V_L}, v{V_L+4}")
        a(f"v_add_f32 v{V_T2}, v{V_T2}, v{V_L+8}")
        a(f"v_cmp_nle_f32 vcc, 0x33800000, v{V_T0}")
        a(f"s_mov_b64 s[{S_T}:{S_T+1}], vcc")
        a(f"v_cmp_nge_f32 vcc, 0x4b800000, v{V_T1}")
        a(f"s_or_b64 s[{S_T}:{S_T+1}], s[{S_T}:{S_T+1}], vcc")
        a(f"v_cmp_u_f32 vcc, v{V_T2}, v{V_T2}")
        a(f"s_or_b64 s[{S_T}:{S_T+1}], s[{S_T}:{S_T+1}], vcc")
        if self.force_slow: a("s_branch L_slow")
        a("s_cbranch_scc1 L_slow")
        a("L_norm:")
        BO, BX = V_Q, V_S
        for qt in range(3):
            a(f"v_rcp_f32 v{V_L+4*qt}, v{V_L+4*qt}")
        a(f"s_mul_i32 s{S_T}, s{S_W}, 12288"); a(f"s_add_u32 s{S_T}, s{S_T}, {L_EX}")
        a(f"s_xor_b32 s{S_T+1}, s{S_W}, 2"); a(f"s_mul_i32 s{S_T+1}, s{S_T+1}, 12288"); a(f"s_add_u32 s{S_T+1}, s{S_T+1}, {L_EX}")
        for qt in range(3):
            a(f"v_mov_b32 v{V_L+4*qt+1}, v{V_L+4*qt}")
        a(f"v_lshlrev_b32 v{V_T0}, 4, v{L}")
        a(f"v_add_u32 v{V_T1}, s{S_T+1}, v{V_T0}")
        a(f"v_add_u32 v{V_T0}, s{S_T}, v{V_T0}")
        for ks in range(4):
            for qt in range(3):
                ta = V_O + ((2 * ks) * 3 + qt) * 4; tb = V_O + ((2 * ks + 1) * 3 + qt) * 4
                for b in (ta, ta + 2, tb, tb + 2):
                    a(f"v_pk_mul_f32 {vr(b,2)}, {vr(b,2)}, {vr(V_L+4*qt,2)}")
                d = BO + (ks * 3 + qt) * 4
                a(f"v_cvt_pk_bf16_f32 v{d}, v{ta}, v{ta+1}"); a(f"v_cvt_pk_bf16_f32 v{d+1}, v{ta+2}, v{ta+3}")
                a(f"v_cvt_pk_bf16_f32 v{d+2}, v{tb}, v{tb+1}"); a(f"v_cvt_pk_bf16_f32 v{d+3}, v{tb+2}, v{tb+3}")
                a(f"ds_write_b128 v{V_T0}, {vr(d)} offset:{(ks*3+qt)*1024}")
        a(f"v_and_b32 v{V_A0}, 3, v{L}"); a(f"v_lshlrev_b32 v{V_A0}, 3, v{V_A0}")
        a(f"v_bfe_u32 v{V_A1}, v{L}, 2, 3"); a(f"v_lshl_add_u32 v{V_A0}, v{V_A1}, 6, v{V_A0}")
        a(f"v_bfe_u32 v{V_A1}, v{L}, 4, 1"); a(f"v_lshl_add_u32 v{V_A0}, v{V_A1}, 5, v{V_A0}")
        a(f"v_lshrrev_b32 v{V_A1}, 5, v{L}"); a(f"v_lshl_add_u32 v{V_A0}, v{V_A1}, 10, v{V_A0}")
        a(f"s_lshr_b32 s{S_T}, s{S_W}, 1"); a(f"s_mul_i32 s{S_T}, s{S_T}, {16384+512}")
        a(f"v_add_u32 v{V_A0}, s{S_T}, v{V_A0}")
        a(f"v_xor_b32 v{V_A1}, 32, v{V_A0}")
        a(f"v_xor_b32 v{V_A2}, 0x4000, v{V_A0}")
        a(f"v_xor_b32 v{V_A3}, 0x4000, v{V_A1}")
        VST = V_T2
        a(f"s_mul_i32 s{S_T}, s{S_W}, 3072")
        a(f"v_lshlrev_b32 v{VST}, 4, v{L}"); a(f"v_add_u32 v{VST}, s{S_T}, v{VST}")
        a(f"s_mov_b32 s62, s{S_PART}")
        a(f"s_mov_b32 s{S_SLOT}, 0")
        a(f"s_mov_b32 s60, {(-4*32768) & 0xffffffff}"); a("s_mov_b32 s61, 32768")
        a("s_waitcnt lgkmcnt(0)")
        st.q = []
        ACC = V_O
        PK = V_O + 24
        for r in range(0): pass
        def order(n):
            if n == 0: return [(tl, oh, ks) for oh in range(2) for tl in range(2) for ks in range(4)]
            return [(tl, oh, ks) for tl in range(2) for oh in range(2) for ks in range(4)]
        seq = [(n,) + f for n in range(10) for f in order(n)]
        def rd(i):
            n, tl, oh, ks = seq[i]
            fr = V_FR + 4 * (i % 4)
            ad = [V_A0, V_A1, V_A2, V_A3][oh * 2 + tl]
            return [('R', f"ds_read_b64_tr_b16 {vr(fr,2)}, v{ad} offset:{ks*4096}", (i, 0)),
                    ('R', f"ds_read_b64_tr_b16 {vr(fr+2,2)}, v{ad} offset:{ks*4096+2048}", i)]
        def cvts(tl):
            o = []
            for qt in range(3):
                s = ACC + 12 * tl + 4 * qt
                for h in range(2): o.append(f"v_cvt_pk_bf16_f32 v{PK + qt*4 + tl*2 + h}, v{s+2*h}, v{s+2*h+1}")
            return o
        def stores():
            return [f"buffer_store_dwordx4 {vr(PK+4*qt)}, v{VST}, s[{S_WS}:{S_WS+3}], s62 offen offset:{qt*1024}{self.spol}" for qt in range(3)] + \
                   ["s_add_u32 s62, s62, 12288"]
        pro = [('X', "s_barrier")]
        for i in range(4): pro += rd(i)
        self.emit(st.run(pro))
        self.stamp(3)
        if self.stamps: st.q = []
        steps = []
        for n in range(9):
            ops = []; pend = []
            extra = {}
            if n == 0:
                xr = [('R', f"ds_read_b128 {vr(BX + 4*j)}, v{V_T1} offset:{j*1024}", ('BX', j)) for j in range(12)]
                for j in range(12): extra.setdefault(j // 2, []).append(xr[j])
                ca = cvts(0)
                for j in range(6): extra.setdefault(13 + j // 2, []).append(('X', ca[j]))
            else:
                cb = cvts(1); ca = cvts(0); ss = stores()
                for j in range(6): extra.setdefault(1 + j // 2, []).append(('X', cb[j]))
                for j in range(4): extra.setdefault(4 + j, []).append(('X', ss[j]))
                for j in range(6): extra.setdefault(9 + j // 2, []).append(('X', ca[j]))
            for f in range(16):
                i = n * 16 + f
                _, tl, oh, ks = seq[i]
                fr = V_FR + 4 * (i % 4)
                first = (oh == 0 and ks == 0)
                for qt in range(3):
                    d = ACC + 12 * tl + 4 * qt
                    B = (BO if oh == 0 else BX) + (ks * 3 + qt) * 4
                    needs = [i] + ([('BX', ks * 3 + qt)] if oh == 1 else [])
                    ops.append(('M', f"{MF} {vr(d)}, {vr(fr)}, {vr(B)}, {'0' if first else vr(d)}", needs))
                    if qt == 0 and pend: ops.append(pend.pop(0))
                    if qt == 1:
                        ops += extra.get(f, [])
                        if f == 11: ops += [('X', s) for s in self.ring_adv(5, 0, 0)]
                        if f == 12:
                            ops.append(('X', "s_barrier"))
                            ops += [('X', f"v_add_u32 v{r}, s{S_D0}, v{r}") for r in (V_A0, V_A1, V_A2, V_A3)]
                    if qt == 2:
                        nr = rd(i + 4)
                        ops.append(nr[0])
                        if f == 15: ops.append(nr[1])
                        else: pend.append(nr[1])
            steps.append(st.run(ops))
        self.emit(steps[0])
        self.roll(steps, 1, 1, 8, "L_p3", allow_first=True)
        a("s_nop 7"); a("s_nop 1")
        self.emit(cvts(1)); self.emit(stores())
        a("s_waitcnt lgkmcnt(0)")

    def write_stamps(self, n):
        a = self.a
        if not self.stamps: return
        a("s_waitcnt vmcnt(0)")
        self.stamp(n - 1)
        a(f"s_cmp_lg_u32 s{S_W}, 0")
        a("s_cbranch_scc1 L_done")
        a(f"s_mul_i32 s{S_T}, s2, {8*n}")
        a(f"s_add_u32 s{S_T}, s{S_T}, {STAMP_OFF}")
        a(f"v_mov_b32 v1, s{S_T}")
        a("s_mov_b64 exec, 1")
        for j in range(n):
            a(f"v_mov_b32 v4, s{S_ST+2*j}"); a(f"v_mov_b32 v5, s{S_ST+2*j+1}")
            a(f"buffer_store_dwordx2 v[4:5], v1, s[{S_WS}:{S_WS+3}], 0 offen offset:{8*j}")
            a("s_nop 1")

    def reducer(self):
        a = self.a
        a("L_fin:")
        a("s_waitcnt vmcnt(0)")
        a("s_barrier")
        self.stamp(4)
        a("L_red:")
        a(f"s_lshl_b32 s{S_T}, s{S_W}, 6")
        a(f"v_add_u32 v0, s{S_T}, v{V_LANE}")
        a(f"s_mul_i32 s{S_T}, s{S_H}, 432")
        a(f"v_add_u32 v1, s{S_T}, v0")
        a("v_lshlrev_b32 v2, 4, v1")
        a(f"s_mul_i32 s{S_T+1}, s{S_B}, {16*PART_BYTES}")
        a("v_cmp_gt_u32 vcc, 432, v0")
        a("s_barrier")
        self.stamp(5)
        a("s_and_b64 exec, exec, vcc")
        a("s_cbranch_execz L_done")
        for p in range(16):
            a(f"buffer_load_dwordx4 {vr(16+4*p)}, v2, s[{S_WS}:{S_WS+3}], s{S_T+1} offen sc0 sc1")
            if p < 15: a(f"s_add_u32 s{S_T+1}, s{S_T+1}, {PART_BYTES}")
        a("v_lshrrev_b32 v3, 6, v1")
        a("v_mul_u32_u24 v4, 0x5556, v3"); a("v_lshrrev_b32 v4, 16, v4")
        a("v_mul_u32_u24 v5, 3, v4"); a("v_sub_u32 v5, v3, v5")
        a("v_and_b32 v6, 1, v4"); a("v_mul_u32_u24 v6, 48, v6")
        a("v_lshl_add_u32 v6, v5, 4, v6")
        a("v_and_b32 v7, 15, v1"); a("v_add_u32 v6, v6, v7")
        a("v_mul_u32_u24 v6, 1152, v6")
        a("v_lshrrev_b32 v7, 1, v4"); a("v_lshl_add_u32 v6, v7, 6, v6")
        a("v_bfe_u32 v7, v1, 4, 2"); a("v_lshl_add_u32 v6, v7, 3, v6")
        a(f"s_mov_b32 s{S_T}, 0xffff0000")
        for p in range(16):
            a(f"s_waitcnt vmcnt({15-p})")
            for r in range(4):
                src = 16 + 4 * p + r
                if p == 0:
                    a(f"v_lshlrev_b32 v{8+2*r}, 16, v{src}"); a(f"v_and_b32 v{9+2*r}, s{S_T}, v{src}")
                else:
                    a(f"v_lshlrev_b32 v2, 16, v{src}"); a(f"v_and_b32 v3, s{S_T}, v{src}")
                    a(f"v_add_f32 v{8+2*r}, v{8+2*r}, v2"); a(f"v_add_f32 v{9+2*r}, v{9+2*r}, v3")
        for r in range(4): a(f"v_cvt_pk_bf16_f32 v{16+r}, v{8+2*r}, v{9+2*r}")
        a(f"buffer_store_dwordx2 v[16:17], v6, s[{S_OUT}:{S_OUT+3}], s{S_XOFF} offen")
        a(f"buffer_store_dwordx2 v[18:19], v6, s[{S_OUT}:{S_OUT+3}], s{S_XOFF} offen offset:32")

    def build(self):
        a = self.a
        k1 = NAME + "_kernel"
        header(a, [(k1, 256, 512, 160 * 1024)])
        kstart(a, k1)
        self.prologue()
        st = Stream()
        self.phase1(st)
        self.phase2(st)
        self.phase3(st)
        self.reducer()
        self.write_stamps(7)
        a("s_branch L_done")
        self.slowpath()
        self.loader()
        a("L_done:")
        a("s_endpgm")
        kdesc(a, k1)
        return a.text()

if __name__ == "__main__":
    import argparse
    ap = argparse.ArgumentParser()
    ap.add_argument("-o", default="v1.s")
    ap.add_argument("--stamps", action="store_true")
    ap.add_argument("--slow", action="store_true")
    ap.add_argument("--kvpol", default=" nt")
    ap.add_argument("--spol", default=" sc0 sc1")
    x = ap.parse_args()
    g = Gen(stamps=x.stamps, kvpol=x.kvpol, spol=x.spol, force_slow=x.slow)
    open(x.o, "w").write(g.build())
```

```python
import sys, struct
from asmlib import *

def f32hex(x):
    return "0x%08x" % struct.unpack("<I", struct.pack("<f", x))[0]

MF = "v_mfma_f32_16x16x32_bf16"
def vr(b, n=4): return f"v[{b}:{b+n-1}]"

class Stream:
    def __init__(self):
        self.q = []
    def run(self, ops):
        out = []
        for op in ops:
            k = op[0]
            if k == 'R':
                out.append(op[1]); self.q.append(op[2])
            elif k in ('M', 'W'):
                needs = op[2]
                idx = -1
                for i, t in enumerate(self.q):
                    if t in needs: idx = i
                if idx >= 0:
                    n = len(self.q) - 1 - idx
                    assert n <= 15
                    out.append(f"s_waitcnt lgkmcnt({n})")
                    self.q = self.q[idx+1:]
                if op[1]: out.append(op[1])
            elif k == 'Z':
                out.append("s_waitcnt lgkmcnt(0)"); self.q = []
            else:
                out.append(op[1])
        return out

V_O = 0
V_Q = 96
V_S = 144
V_P = 192
V_L = 216
V_ONE = 228
V_FR = 232
V_A0, V_A1, V_A2, V_A3 = 248, 249, 250, 251
V_LANE = 252
V_T0, V_T1, V_T2 = 253, 254, 255

S_X, S_K, S_V, S_WQ, S_WO, S_WS, S_OUT = 20, 24, 28, 32, 36, 40, 44
S_B, S_H, S_W = 48, 49, 50
S_CNT, S_SLOT, S_D0, S_D1 = 51, 52, 53, 54
S_SC = 56
S_T = 58
S_KVOFF, S_XOFF, S_WQOFF, S_WOOFF, S_LW, S_PART = 64, 65, 66, 67, 68, 69
S_ST = 72

L_X = 96 * 1024
L_EX = 96 * 1024
PART_BYTES = 110592
STAMP_OFF = 0x8000000
FLAG_OFF = 0x4000000
S_DBG = 96

class Gen:
    def __init__(self, stamps=False, kvpol=" nt", spol=" sc0 sc1", force_slow=False, dbg=False, delay=0):
        self.dbg = dbg; self.delay = delay
        self.a = Asm(); self.stamps = stamps; self.kvpol = kvpol; self.spol = spol
        self.force_slow = force_slow
        self.nst = 0
    def stamp(self, i):
        if self.stamps:
            self.a(f"s_memrealtime s[{S_ST+2*i}:{S_ST+2*i+1}]")
            self.a("s_waitcnt lgkmcnt(0)")
    def emit(self, lines):
        for l in lines: self.a(l)

    def prologue(self):
        a = self.a
        a("s_cmp_ge_u32 s2, 256")
        a("s_cbranch_scc1 L_done")
        a("s_load_dwordx16 s[4:19], s[0:1], 0")
        if self.stamps: a(f"s_memrealtime s[{S_ST}:{S_ST+1}]")
        a(f"v_lshrrev_b32 v1, 6, v0")
        a(f"v_and_b32 v{V_LANE}, 63, v0")
        a(f"s_and_b32 s{S_T}, s2, 1"); a(f"s_lshl_b32 s{S_T}, s{S_T}, 3")
        a(f"s_bfe_u32 s{S_T+1}, s2, 0x30003"); a(f"s_add_u32 s{S_B}, s{S_T}, s{S_T+1}")
        a(f"v_readfirstlane_b32 s{S_W}, v1")
        a(f"s_bfe_u32 s{S_T}, s2, 0x20001"); a(f"s_lshl_b32 s{S_T}, s{S_T}, 2")
        a(f"s_lshr_b32 s{S_T+1}, s2, 6"); a(f"s_add_u32 s{S_H}, s{S_T}, s{S_T+1}")
        a(f"s_lshl_b32 s{S_T}, s{S_B}, 4"); a(f"s_add_u32 s{S_T}, s{S_T}, s{S_H}")
        a(f"s_lshl_b32 s{S_KVOFF}, s{S_T}, 17")
        a(f"s_mul_i32 s{S_PART}, s{S_T}, {PART_BYTES}")
        a(f"s_mul_i32 s{S_XOFF}, s{S_B}, 110592")
        a(f"s_lshl_b32 s{S_WQOFF}, s{S_H}, 9")
        a(f"s_mul_i32 s{S_WOOFF}, s{S_H}, {256*1152}")
        a("s_waitcnt lgkmcnt(0)")
        srd(a, S_X, 4, 16*96*576*2)
        srd(a, S_WQ, 10, 576*4096*2)
        srd(a, S_K, 6, 16*16*512*128*2)
        srd(a, S_V, 8, 16*16*512*128*2)
        srd(a, S_WO, 12, 4096*576*2)
        srd(a, S_WS, 18, 0x10000000)
        srd(a, S_OUT, 14, 16*96*576*2)
        srd(a, S_DBG, 16, 256)
        if self.delay:
            a("s_memrealtime s[60:61]"); a("s_waitcnt lgkmcnt(0)")
            a(f"s_add_u32 s60, s60, {self.delay}")
            a("L_delay:")
            a("s_memrealtime s[62:63]"); a("s_waitcnt lgkmcnt(0)")
            a("s_sub_u32 s62, s62, s60"); a("s_cmp_lt_i32 s62, 0"); a("s_cbranch_scc1 L_delay")
        a(f"s_cmp_ge_u32 s{S_W}, 4")
        a("s_cbranch_scc1 L_loader")

    def loader(self):
        a = self.a
        a("L_loader:")
        L = V_LANE
        vWq, vX, vK, vV, vWo, t0, t1, t2 = 1, 2, 3, 4, 5, 6, 7, 8
        a(f"s_sub_u32 s{S_LW}, s{S_W}, 4")
        lw = S_LW
        a(f"v_and_b32 v{t0}, 3, v{L}")
        a(f"v_bfe_u32 v{t1}, v{L}, 2, 2")
        a(f"v_lshrrev_b32 v{t2}, 4, v{L}")
        a(f"s_and_b32 s{S_T}, s{lw}, 1")
        a(f"v_xor_b32 v{vWq}, s{S_T}, v{t0}")
        a(f"v_lshlrev_b32 v{vWq}, 4, v{vWq}")
        a(f"v_lshl_add_u32 v{vWq}, v{t2}, 6, v{vWq}")
        a(f"v_lshl_add_u32 v{vWq}, v{t1}, 13, v{vWq}")
        a(f"s_lshl_b32 s{S_T+1}, s{lw}, 16")
        a(f"v_add_u32 v{vWq}, s{S_T+1}, v{vWq}")
        a(f"v_and_b32 v9, 1, v{t2}")
        a(f"s_lshl_b32 s{S_T+1}, s{S_T}, 1")
        a(f"v_add_u32 v9, s{S_T+1}, v9")
        a(f"v_sub_u32 v9, 0, v9")
        a(f"v_and_b32 v9, 3, v9")
        a(f"v_xor_b32 v9, v9, v{t0}")
        a(f"v_lshlrev_b32 v9, 4, v9")
        a(f"v_lshrrev_b32 v10, 5, v{L}")
        a(f"v_lshl_add_u32 v9, v10, 6, v9")
        a(f"v_bfe_u32 v11, v{L}, 2, 3")
        a(f"s_lshl_b32 s{S_T+1}, s{lw}, 3")
        a(f"v_add_u32 v11, s{S_T+1}, v11")
        a(f"s_movk_i32 s{S_T+2}, 1152")
        a(f"v_mad_u32_u24 v{vX}, v11, s{S_T+2}, v9")
        a(f"v_and_b32 v9, 1, v{t2}")
        a(f"v_lshlrev_b32 v9, 1, v9")
        a(f"v_xor_b32 v9, v9, v{t0}")
        a(f"v_lshlrev_b32 v9, 4, v9")
        a(f"v_lshl_add_u32 v9, v10, 6, v9")
        a(f"v_mad_u32_u24 v{vWo}, v11, s{S_T+2}, v9")
        a(f"s_sub_u32 s{S_T+1}, 0, s{lw}"); a(f"s_and_b32 s{S_T+1}, s{S_T+1}, 3")
        a(f"v_lshlrev_b32 v9, 8, v{t1}")
        a(f"v_lshl_add_u32 v9, v{t2}, 6, v9")
        a(f"s_lshl_b32 s{S_T+2}, s{lw}, 10")
        a(f"v_add_u32 v9, s{S_T+2}, v9")
        a(f"v_xor_b32 v10, s{S_T+1}, v{t0}")
        a(f"v_lshl_add_u32 v{vK}, v10, 4, v9")
        a(f"s_lshl_b32 s{S_T+1}, s{S_T}, 1")
        a(f"v_xor_b32 v10, s{S_T+1}, v{t0}")
        a(f"v_lshl_add_u32 v{vV}, v10, 4, v9")
        a(f"s_lshl_b32 s70, s{lw}, 10"); a(f"s_lshl_b32 s71, s{lw}, 12")

        issued = []
        def piece(item, ldsbase_s, ldsimm, voff, srd_, sbase, gimm, pol):
            a(f"s_add_u32 m0, s{ldsbase_s}, {ldsimm}")
            a(f"s_add_u32 s{S_T}, s{sbase}, {gimm}")
            a(f"buffer_load_dwordx4 v{voff}, s[{srd_}:{srd_+3}], s{S_T} offen{pol} lds")
            issued.append(item)
        def load(item):
            kind, t = item
            if kind == 'wq':
                for p in range(4):
                    piece(item, 71, (t % 6) * 16384 + p * 1024, vWq, S_WQ, S_WQOFF, t * 32 * 8192 + (p >> 1) * 32768 + (p & 1) * 256, "")
            elif kind == 'x':
                for p in range(3):
                    piece(item, 70, L_X + (t % 3) * 12288 + p * 4096, vX, S_X, S_XOFF, t * 128 + p * 32 * 1152, "")
            elif kind == 'kv':
                if t < 16:
                    for p in range(2):
                        piece(item, 70, (t % 6) * 16384 + p * 4096, vK, S_K, S_KVOFF, t * 8192 + p * 4096, self.kvpol)
                if t >= 2:
                    for p in range(2):
                        piece(item, 70, (t % 6) * 16384 + 8192 + p * 4096, vV, S_V, S_KVOFF, (t - 2) * 8192 + p * 4096, self.kvpol)
            elif kind == 'wo':
                nb, hd = t >> 1, t & 1
                for p in range(4):
                    piece(item, 70, (nb % 5) * 32768 + hd * 16384 + p * 4096, vWo, S_WO, S_WOOFF, (hd * 128 + p * 32) * 1152 + nb * 128, "")
        bars = []
        for t in range(18): bars.append((f"B{t}", [('wq', t)] + ([('x', t // 2)] if t % 2 == 0 else [])))
        bars.append(("B18", []))
        for t in range(18): bars.append((f"C{t}", [('kv', t)]))
        for n in range(9): bars.append((f"D{n}", [('wo', 2 * n), ('wo', 2 * n + 1)]))
        bars.append(("D9", []))
        bi = {n: i for i, (n, _) in enumerate(bars)}
        order = []
        for t in range(18):
            if t % 2 == 0:
                c = t // 2
                order.append((('x', c), -1 if c < 3 else bi[f"B{2*(c-3)+3}"]))
            order.append((('wq', t), -1 if t < 6 else bi[f"B{t-4}"]))
        for t in range(18):
            if t < 5: rel = bi[f"B{t+14}"]
            elif t == 5: rel = bi["C0"]
            else: rel = bi[f"C{t-4}"]
            order.append((('kv', t), rel))
        for h in range(18):
            nb, hd = h >> 1, h & 1
            if nb < 2: rel = bi[f"C{12 + h + 2}"]
            elif nb == 2: rel = bi["D0"]
            elif nb < 5: rel = bi["D1"]
            else: rel = bi[f"D{nb-3}"]
            order.append((('wo', h), rel))
        pos = 0
        def issue_ready(cur):
            nonlocal pos
            while pos < len(order) and order[pos][1] <= cur:
                load(order[pos][0]); pos += 1
        issue_ready(-1)
        lastwait = None
        for i, (name, needs) in enumerate(bars):
            if needs:
                idx = max(j for j, it in enumerate(issued) if it in needs)
                for nd in needs: assert nd in issued, (name, nd)
                n = len(issued) - 1 - idx
                assert n <= 63
                a(f"s_waitcnt vmcnt({n})")
            a("s_barrier")
            if self.stamps and name in ("B0", "C0", "D0"):
                pass
            issue_ready(i)
        assert pos == len(order)
        a(f"s_cmp_lg_u32 s{S_W}, 4")
        a("s_cbranch_scc1 L_fin")
        a(f"s_lshl_b32 s{S_T+1}, s{S_B}, 4")
        a("v_mov_b32 v1, 0")
        a(f"s_mov_b32 s{S_CNT}, 0")
        a("L_poll0:")
        a(f"buffer_load_dword v2, v1, s[{S_DBG}:{S_DBG+3}], s{S_T+1} offen sc0 sc1")
        a("s_waitcnt vmcnt(0)")
        a(f"v_readfirstlane_b32 s{S_T}, v2")
        a(f"s_add_u32 s{S_CNT}, s{S_CNT}, 1")
        a(f"s_cmp_ge_u32 s{S_T}, 16")
        a("s_cbranch_scc1 L_poll0_ok")
        a(f"s_cmp_lt_u32 s{S_CNT}, 0x100000")
        a("s_cbranch_scc1 L_poll0")
        a("L_poll0_ok:")
        a(f"s_lshr_b32 s{S_T}, s{S_KVOFF}, 10")
        a(f"s_add_u32 s{S_T}, s{S_T}, {FLAG_OFF}")
        a(f"s_lshl_b32 s{S_T+1}, s{S_B}, 11")
        a(f"s_add_u32 s{S_T+1}, s{S_T+1}, {FLAG_OFF}")
        a(f"v_and_b32 v3, 15, v{V_LANE}"); a("v_lshlrev_b32 v3, 7, v3")
        a("v_mov_b32 v2, 1")
        a("s_barrier")
        a("s_mov_b64 exec, 1")
        a(f"buffer_store_dword v2, v1, s[{S_WS}:{S_WS+3}], s{S_T} offen sc0 sc1")
        a("s_mov_b64 exec, 0xffff")
        a(f"s_mov_b32 s{S_CNT}, 0")
        a("L_poll1:")
        a(f"buffer_load_dword v4, v3, s[{S_WS}:{S_WS+3}], s{S_T+1} offen sc0 sc1")
        a("s_waitcnt vmcnt(0)")
        a("v_cmp_ne_u32 vcc, 1, v4")
        a(f"s_add_u32 s{S_CNT}, s{S_CNT}, 1")
        a("s_cbranch_vccz L_poll1_ok")
        a(f"s_cmp_lt_u32 s{S_CNT}, 0x100000")
        a("s_cbranch_scc1 L_poll1")
        a("L_poll1_ok:")
        a("s_mov_b64 exec, -1")
        a("s_branch L_red")
        self.nbars = len(bars)

    def ring_adv(self, nslots, dpos, dneg, dpos2=None, dneg2=None):
        o = [f"s_add_u32 s{S_SLOT}, s{S_SLOT}, 1",
             f"s_cmp_eq_u32 s{S_SLOT}, {nslots}",
             f"s_cselect_b32 s{S_SLOT}, 0, s{S_SLOT}",
             f"s_cselect_b32 s{S_D0}, s60, s61"]
        if dpos2 is not None: o.append(f"s_cselect_b32 s{S_D1}, s62, s63")
        return o

    def phase1(self, st):
        a = self.a
        L = V_LANE
        a(f"s_lshr_b32 s{S_T}, s{S_W}, 1")
        a(f"s_and_b32 s{S_T+1}, s{S_W}, 1")
        a(f"v_lshrrev_b32 v{V_T0}, 4, v{L}")
        a(f"v_and_b32 v{V_T1}, 3, v{L}")
        a(f"v_and_b32 v{V_T2}, 1, v{V_T0}")
        a(f"v_xor_b32 v{V_A0}, v{V_T1}, v{V_T2}")
        a(f"v_lshlrev_b32 v{V_A0}, 4, v{V_A0}")
        a(f"v_lshl_add_u32 v{V_A0}, v{V_T0}, 12, v{V_A0}")
        a(f"v_and_b32 v{V_A1}, 1, v{V_T1}")
        a(f"v_lshl_add_u32 v{V_A0}, v{V_A1}, 3, v{V_A0}")
        a(f"v_bfe_u32 v{V_A1}, v{L}, 2, 2")
        a(f"v_lshl_add_u32 v{V_A0}, v{V_A1}, 6, v{V_A0}")
        a(f"s_lshl_b32 s{S_T+2}, s{S_T}, 10")
        a(f"v_add_u32 v{V_A0}, s{S_T+2}, v{V_A0}")
        a(f"v_xor_b32 v{V_A1}, 8, v{V_A0}")
        a(f"v_bfe_u32 v{V_A2}, v{L}, 2, 2")
        a(f"v_sub_u32 v{V_A2}, 0, v{V_A2}")
        a(f"v_and_b32 v{V_A2}, 3, v{V_A2}")
        a(f"v_xor_b32 v{V_A2}, v{V_A2}, v{V_T0}")
        a(f"v_lshlrev_b32 v{V_A2}, 4, v{V_A2}")
        a(f"v_mov_b32 v{V_A3}, v{V_A2}")
        a(f"v_and_b32 v{V_T1}, 7, v{L}")
        a(f"v_lshl_add_u32 v{V_A2}, v{V_T1}, 6, v{V_A2}")
        a(f"v_bfe_u32 v{V_T1}, v{L}, 3, 1")
        a(f"v_lshl_add_u32 v{V_A2}, v{V_T1}, 10, v{V_A2}")
        a(f"s_mul_i32 s{S_T+2}, s{S_T+1}, 6144")
        a(f"s_add_u32 s{S_T+2}, s{S_T+2}, {L_X}")
        a(f"v_add_u32 v{V_A2}, s{S_T+2}, v{V_A2}")
        for r in range(96): a(f"v_mov_b32 v{V_O+r}, 0")
        a(f"s_mov_b32 s{S_SLOT}, 0")
        a(f"s_mov_b32 s60, {-65536 & 0xffffffff}"); a("s_mov_b32 s61, 32768")
        a(f"s_mov_b32 s62, {-24576 & 0xffffffff}"); a("s_mov_b32 s63, 12288")
        XB = V_S
        def rdA(t, f):
            dblk, tl = f >> 1, f & 1
            fr = V_FR + 4 * (f % 4)
            ad = V_A0 if tl == 0 else V_A1
            base = (t & 1) * 16384 + dblk * 256
            return [('R', f"ds_read_b64_tr_b16 {vr(fr,2)}, v{ad} offset:{base}", ('A', t, f, 0)),
                    ('R', f"ds_read_b64_tr_b16 {vr(fr+2,2)}, v{ad} offset:{base+2048}", ('A', t, f))]
        def rdX(t, qt):
            return ('R', f"ds_read_b128 {vr(XB + 12*(t&1) + 4*qt)}, v{V_A2} offset:{qt*2048 + (t&1)*512}", ('X', t, qt))
        a(f"s_cmp_lg_u32 s{S_W}, 0")
        a("s_cbranch_scc1 L_nostart")
        a(f"s_lshr_b32 s{S_T}, s{S_KVOFF}, 10")
        a(f"s_add_u32 s{S_T}, s{S_T}, {FLAG_OFF}")
        a(f"s_lshl_b32 s{S_T+1}, s{S_B}, 4")
        a(f"v_mov_b32 v{V_T0}, 0"); a(f"v_mov_b32 v{V_T1}, 1")
        a("s_mov_b64 exec, 1")
        a(f"buffer_store_dword v{V_T0}, v{V_T0}, s[{S_WS}:{S_WS+3}], s{S_T} offen sc0 sc1")
        a("s_waitcnt vmcnt(0)")
        a(f"buffer_atomic_add v{V_T1}, v{V_T0}, s[{S_DBG}:{S_DBG+3}], s{S_T+1} offen sc1")
        a("s_mov_b64 exec, -1")
        a("L_nostart:")
        pro = [('X', "s_barrier")]
        pro += [rdX(0, q) for q in range(3)]
        for f in range(4): pro += rdA(0, f)
        self.emit(st.run(pro))
        self.stamp(1)
        st.q = [] if self.stamps else st.q
        steps = []
        for t in range(18):
            ops = []
            pend = []
            for f in range(8):
                fr = V_FR + 4 * (f % 4)
                for qt in range(3):
                    acc = V_O + (f * 3 + qt) * 4
                    ops.append(('M', f"{MF} {vr(acc)}, {vr(fr)}, {vr(XB + 12*(t&1) + 4*qt)}, {vr(acc)}", [('A', t, f), ('X', t, qt)]))
                    if qt == 0 and pend: ops.append(pend.pop(0))
                    if qt == 1:
                        if f == 2 and (t & 1): ops += [('X', s) for s in self.ring_adv(3, 0, 0, 0, 0)]
                        if f == 3:
                            ops.append(('X', "s_barrier"))
                            if t & 1: ops.append(('X', f"v_add_u32 v{V_A2}, s{S_D1}, v{V_A2}"))
                            ops.append(rdX(t + 1, 0))
                        if f == 4:
                            if t & 1:
                                ops += [('X', f"v_add_u32 v{V_A0}, s{S_D0}, v{V_A0}"), ('X', f"v_add_u32 v{V_A1}, s{S_D0}, v{V_A1}")]
                            ops += [rdX(t + 1, 1), rdX(t + 1, 2)]
                    if qt == 2:
                        nr = rdA(t, f + 4) if f < 4 else rdA(t + 1, f - 4)
                        ops.append(nr[0])
                        if f == 7: ops.append(nr[1])
                        else: pend.append(nr[1])
            steps.append(st.run(ops))
        self.roll(steps, 0, 2, 9, "L_p1", allow_first=True)
        a("s_nop 7")
        c = f32hex(128 ** -0.5 * 1.4426950408889634)
        a(f"s_mov_b32 s{S_SC}, {c}"); a(f"s_mov_b32 s{S_SC+1}, {c}")
        a("s_mov_b32 vcc_lo, 0xffff0000"); a("s_mov_b32 vcc_hi, 0xffff0000")
        tmp = V_P
        k = 0
        for s in range(4):
            for qt in range(3):
                t0 = V_O + ((2 * s) * 3 + qt) * 4; t1 = V_O + ((2 * s + 1) * 3 + qt) * 4
                for b in (t0, t0 + 2, t1, t1 + 2):
                    a(f"v_pk_mul_f32 {vr(b,2)}, {vr(b,2)}, s[{S_SC}:{S_SC+1}]")
                T = tmp + 4 * (k % 4); k += 1
                a(f"v_cvt_pk_bf16_f32 v{T}, v{t0}, v{t0+1}"); a(f"v_cvt_pk_bf16_f32 v{T+1}, v{t0+2}, v{t0+3}")
                a(f"v_cvt_pk_bf16_f32 v{T+2}, v{t1}, v{t1+1}"); a(f"v_cvt_pk_bf16_f32 v{T+3}, v{t1+2}, v{t1+3}")
                q = V_Q + (qt * 4 + s) * 4
                a(f"v_cndmask_b32 v{q}, v{T}, v{T+2}, vcc"); a(f"v_cndmask_b32 v{q+1}, v{T+1}, v{T+3}, vcc")
                a(f"v_cndmask_b32 v{q+2}, v{T+2}, v{T}, vcc"); a(f"v_cndmask_b32 v{q+3}, v{T+3}, v{T+1}, vcc")

    def roll(self, steps, start, period, trips, label, allow_first=False):
        a = self.a
        body = sum(steps[start + period: start + 2 * period], []) if trips > 1 else sum(steps[start:start + period], [])
        for k in range(trips):
            b = sum(steps[start + k * period: start + (k + 1) * period], [])
            if b != body:
                if k == 0 and allow_first:
                    nb = [x for x in body if not x.startswith("s_waitcnt")]
                    nf = [x for x in b if not x.startswith("s_waitcnt")]
                    assert nb == nf, label
                    self.check_waits(b, body, label)
                else:
                    raise AssertionError(f"loop {label} trip {k} differs")
        a(f"s_mov_b32 s{S_CNT}, {trips}")
        a(f"{label}:")
        self.emit(body)
        a(f"s_sub_u32 s{S_CNT}, s{S_CNT}, 1")
        a(f"s_cmp_lg_u32 s{S_CNT}, 0")
        a(f"s_cbranch_scc1 {label}")
    def check_waits(self, first, body, label):
        def waits(l):
            d = {}; n = 0
            for x in l:
                if x.startswith("s_waitcnt"): d[n] = int(x.split("(")[1][:-1])
                else: n += 1
            return d
        wf, wb = waits(first), waits(body)
        for p, v in wf.items():
            assert p in wb and wb[p] <= v, (label, p, v, wb.get(p))

    def kv_addrs(self, base_imm):
        a = self.a; L = V_LANE
        a(f"v_lshrrev_b32 v{V_T0}, 4, v{L}")
        a(f"v_bfe_u32 v{V_T1}, v{L}, 2, 2")
        a(f"v_sub_u32 v{V_A3}, 0, v{V_T1}")
        a(f"v_and_b32 v{V_A3}, 3, v{V_A3}")
        a(f"v_xor_b32 v{V_A3}, v{V_A3}, v{V_T0}")
        a(f"v_lshlrev_b32 v{V_A3}, 4, v{V_A3}")
        a(f"v_lshl_add_u32 v{V_A3}, v{V_T1}, 10, v{V_A3}")
        a(f"v_and_b32 v{V_T2}, 3, v{L}")
        a(f"v_lshl_add_u32 v{V_A3}, v{V_T2}, 6, v{V_A3}")
        a(f"v_lshlrev_b32 v{V_A0}, 3, v{V_T2}")
        a(f"v_lshl_add_u32 v{V_A0}, v{V_T1}, 6, v{V_A0}")
        a(f"v_lshl_add_u32 v{V_A0}, v{V_T0}, 10, v{V_A0}")
        a(f"v_and_b32 v{V_T0}, 1, v{V_T0}")
        a(f"v_lshl_add_u32 v{V_A0}, v{V_T0}, 5, v{V_A0}")
        a(f"v_xor_b32 v{V_A1}, 32, v{V_A0}")

    def phase2(self, st):
        a = self.a
        self.kv_addrs(0)
        for r in range(4): a(f"v_mov_b32 v{V_ONE+r}, 0x3f803f80")
        a(f"s_mov_b32 s{S_SLOT}, 0")
        def frags(t):
            fl = []
            if t < 16: fl += [('K', i) for i in range(8)]
            if 2 <= t < 18: fl += [('V', i) for i in range(8)]
            return fl
        seq = [(t, k, i) for t in range(18) for (k, i) in frags(t)]
        gidx = {x: n for n, x in enumerate(seq)}
        def rd(n):
            t, k, i = seq[n]
            fr = V_FR + 4 * (n % 4)
            base = (t & 1) * 16384
            if k == 'K':
                kt, s = i >> 2, i & 3
                return [('R', f"ds_read_b128 {vr(fr)}, v{V_A3} offset:{base + kt*4096 + s*256}", n)]
            ad = V_A0 if (i & 1) == 0 else V_A1
            o = base + 8192 + (i >> 1) * 256
            return [('R', f"ds_read_b64_tr_b16 {vr(fr,2)}, v{ad} offset:{o}", (n, 0)),
                    ('R', f"ds_read_b64_tr_b16 {vr(fr+2,2)}, v{ad} offset:{o+4096}", n)]
        pro = [('X', "s_barrier")]
        for n in range(4): pro += rd(n)
        self.emit(st.run(pro))
        self.stamp(2)
        if self.stamps: st.q = []
        steps = []
        zero = [f"v_mov_b32 v{V_O+r}, 0" for r in range(96)] + [f"v_mov_b32 v{V_L+r}, 0" for r in range(12)]
        for t in range(18):
            val = []
            if 1 <= t <= 16:
                sb = V_S + 24 * ((t - 1) & 1); pb = V_P + 12 * ((t - 1) & 1)
                ex = []; cv = []
                for kt in range(2):
                    for qt in range(3):
                        s0 = sb + (kt * 3 + qt) * 4
                        for h in range(2):
                            ex.append([f"v_exp_f32 v{s0+2*h}, v{s0+2*h}", f"v_exp_f32 v{s0+2*h+1}, v{s0+2*h+1}"])
                            cv.append(f"v_cvt_pk_bf16_f32 v{pb + qt*4 + kt*2 + h}, v{s0+2*h}, v{s0+2*h+1}")
                for i in range(12):
                    val += [(8, ex[i][0]), (8, ex[i][1])]
                    if i >= 1: val.append((4, cv[i - 1]))
                val.append((0, "s_nop 0"))
                val.append((4, cv[11]))
            if t == 0: val += [(4, z) for z in zero[:60]]
            if t == 1: val += [(4, z) for z in zero[60:]]
            fl = frags(t)
            groups = [(t, k, i) for (k, i) in fl]
            ops = []
            gaps = []
            pend = []
            for g in groups:
                n = gidx[g]; _, k, i = g
                fr = V_FR + 4 * (n % 4)
                for qt in range(3):
                    if k == 'K':
                        kt, s = i >> 2, i & 3
                        d = V_S + 24 * (t & 1) + (kt * 3 + qt) * 4
                        m = ('M', f"{MF} {vr(d)}, {vr(fr)}, {vr(V_Q + (qt*4+s)*4)}, {'0' if s == 0 else vr(d)}", [n])
                    else:
                        d = V_O + (i * 3 + qt) * 4
                        m = ('M', f"{MF} {vr(d)}, {vr(fr)}, {vr(V_P + 12*(t&1) + qt*4)}, {vr(d)}", [n])
                    fx = []; cost = 0
                    if qt == 0 and pend:
                        fx.append(pend.pop(0)); cost += 4
                    nn = n + 4
                    if qt == 1 and nn < len(seq) and seq[nn][0] != t and seq[nn - 1][0] == t:
                        fx.append(('X', "s_barrier")); cost += 4
                        if t & 1:
                            fx += [('X', f"v_add_u32 v{r}, s{S_D0}, v{r}") for r in (V_A3, V_A0, V_A1)]; cost += 12
                    if qt == 1 and (t & 1) and nn + 1 < len(seq) and seq[nn + 1][0] != t and seq[nn][0] == t:
                        fx += [('X', s) for s in self.ring_adv(3, 0, 0)]; cost += 8
                    if qt == 2:
                        cost += 4
                        if nn < len(seq):
                            nr = rd(nn)
                            fx.append(nr[0]); cost += 4
                            if len(nr) > 1:
                                if g == groups[-1] : fx.append(nr[1]); cost += 4
                                else: pend.append(nr[1])
                    gaps.append([m, fx, cost])
            if t >= 2:
                for qt in range(3):
                    d = V_L + 4 * qt
                    gaps.append([('M', f"{MF} {vr(d)}, {vr(V_ONE)}, {vr(V_P + 12*(t&1) + qt*4)}, {vr(d)}", []), [], 0])
            tot_val = sum(c for c, _ in val)
            free = [max(0, 8 - g[2]) for g in gaps]
            tot_free = sum(free)
            scale = max(1.0, tot_val / tot_free) if tot_free else 1
            budget = 0.0; vi = 0
            for gi, (m, fx, cost) in enumerate(gaps):
                ops.append(m); ops += fx
                budget += free[gi] * scale
                while vi < len(val) and budget >= val[vi][0] - 1e-6:
                    budget -= val[vi][0]; ops.append(('X', val[vi][1])); vi += 1
            while vi < len(val):
                ops.append(('X', val[vi][1])); vi += 1
            steps.append(st.run(ops))
        self.emit(steps[0]); self.emit(steps[1])
        self.roll(steps, 2, 2, 6, "L_p2", allow_first=True)
        for t in (14, 15, 16, 17):
            if t >= 16: a("s_nop 1")
            self.emit(steps[t])

    def slowpath(self):
        a = self.a; L = V_LANE
        a("L_slow:")
        M = V_P + 12
        KO = V_P + 16
        VO0 = V_P + 17
        VO1 = V_P + 18
        PM = V_P + 19
        a(f"v_and_b32 v{V_T0}, 15, v{L}"); a(f"v_lshrrev_b32 v{V_T1}, 4, v{L}")
        a(f"v_lshlrev_b32 v{KO}, 8, v{V_T0}"); a(f"v_lshl_add_u32 v{KO}, v{V_T1}, 4, v{KO}")
        a(f"v_bfe_u32 v{V_T0}, v{L}, 2, 2"); a(f"v_lshlrev_b32 v{VO0}, 8, v{V_T0}")
        a(f"v_lshl_add_u32 v{VO0}, v{V_T1}, 6, v{VO0}")
        a(f"v_and_b32 v{V_T0}, 3, v{L}"); a(f"v_lshl_add_u32 v{VO0}, v{V_T0}, 4, v{VO0}")
        a(f"v_xor_b32 v{VO1}, 32, v{VO0}")
        self.kv_addrs(0)
        a(f"s_mul_i32 s{S_D0}, s{S_W}, 12288"); a(f"s_add_u32 s{S_D0}, s{S_D0}, {L_EX}")
        a(f"v_add_u32 v{V_A0}, s{S_D0}, v{V_A0}"); a(f"v_add_u32 v{V_A1}, s{S_D0}, v{V_A1}")
        for q in range(3): a(f"v_mov_b32 v{M+q}, 0xff800000")
        for r in range(96): a(f"v_mov_b32 v{V_O+r}, 0")
        for r in range(12): a(f"v_mov_b32 v{V_L+r}, 0")
        def qk(kt):
            a(f"s_add_u32 s{S_T}, s61, {kt*4096}")
            for s in range(4):
                a(f"buffer_load_dwordx4 {vr(V_FR+4*s)}, v{KO}, s[{S_K}:{S_K+3}], s{S_T} offen offset:{s*64}")
            a("s_waitcnt vmcnt(0)")
            for s in range(4):
                for qt in range(3):
                    d = V_S + (kt * 3 + qt) * 4
                    a(f"{MF} {vr(d)}, {vr(V_FR+4*s)}, {vr(V_Q + (qt*4+s)*4)}, {'0' if s == 0 else vr(d)}")
            a("s_nop 7"); a("s_nop 3")
        a(f"s_mov_b32 s61, s{S_KVOFF}"); a(f"s_mov_b32 s{S_CNT}, 32")
        a("L_slow1:")
        qk(0)
        for qt in range(3):
            d = V_S + qt * 4
            a(f"v_max3_f32 v{M+qt}, v{M+qt}, v{d}, v{d+1}"); a(f"v_max3_f32 v{M+qt}, v{M+qt}, v{d+2}, v{d+3}")
        a("s_add_u32 s61, s61, 4096")
        a(f"s_sub_u32 s{S_CNT}, s{S_CNT}, 1"); a(f"s_cmp_lg_u32 s{S_CNT}, 0"); a("s_cbranch_scc1 L_slow1")
        for x in (16, 32):
            a(f"v_xor_b32 v{PM}, {x}, v{L}"); a(f"v_lshlrev_b32 v{PM}, 2, v{PM}")
            for qt in range(3): a(f"ds_bpermute_b32 v{V_S+qt}, v{PM}, v{M+qt}")
            a("s_waitcnt lgkmcnt(0)")
            for qt in range(3): a(f"v_max_f32 v{M+qt}, v{M+qt}, v{V_S+qt}")
        a(f"s_mov_b32 s61, s{S_KVOFF}"); a(f"s_mov_b32 s{S_CNT}, 16")
        a("L_slow2:")
        for p in range(8):
            a(f"s_add_u32 m0, s{S_D0}, {p*1024}")
            a(f"s_add_u32 s{S_T}, s61, {p*1024}")
            a(f"buffer_load_dwordx4 v{VO0 if p % 2 == 0 else VO1}, s[{S_V}:{S_V+3}], s{S_T} offen lds")
        qk(0); qk(1)
        for kt in range(2):
            for qt in range(3):
                d = V_S + (kt * 3 + qt) * 4
                for r in range(4): a(f"v_sub_f32 v{d+r}, v{d+r}, v{M+qt}")
                for r in range(4): a(f"v_exp_f32 v{d+r}, v{d+r}")
                a("s_nop 0")
                for h in range(2): a(f"v_cvt_pk_bf16_f32 v{V_P + qt*4 + kt*2 + h}, v{d+2*h}, v{d+2*h+1}")
        for half in range(2):
            for i4 in range(4):
                i = half * 4 + i4
                ad = V_A0 if (i & 1) == 0 else V_A1
                fr = V_FR + 4 * i4
                a(f"ds_read_b64_tr_b16 {vr(fr,2)}, v{ad} offset:{(i>>1)*256}")
                a(f"ds_read_b64_tr_b16 {vr(fr+2,2)}, v{ad} offset:{(i>>1)*256+4096}")
            a("s_waitcnt lgkmcnt(0)")
            for i4 in range(4):
                i = half * 4 + i4
                for qt in range(3):
                    d = V_O + (i * 3 + qt) * 4
                    a(f"{MF} {vr(d)}, {vr(V_FR+4*i4)}, {vr(V_P + qt*4)}, {vr(d)}")
            a("s_nop 7")
        for qt in range(3):
            d = V_L + 4 * qt
            a(f"{MF} {vr(d)}, {vr(V_ONE)}, {vr(V_P + qt*4)}, {vr(d)}")
        a("s_nop 7")
        a("s_add_u32 s61, s61, 8192")
        a(f"s_sub_u32 s{S_CNT}, s{S_CNT}, 1"); a(f"s_cmp_lg_u32 s{S_CNT}, 0"); a("s_cbranch_scc1 L_slow2")
        a("s_nop 7")
        a("s_branch L_norm")

    def phase3(self, st):
        a = self.a; L = V_LANE
        a("s_nop 7"); a("s_nop 1")
        a(f"v_min3_f32 v{V_T0}, v{V_L}, v{V_L+4}, v{V_L+8}")
        a(f"v_max3_f32 v{V_T1}, v{V_L}, v{V_L+4}, v{V_L+8}")
        a(f"v_add_f32 v{V_T2}, v{V_L}, v{V_L+4}")
        a(f"v_add_f32 v{V_T2}, v{V_T2}, v{V_L+8}")
        a(f"v_cmp_nle_f32 vcc, 0x33800000, v{V_T0}")
        a(f"s_mov_b64 s[{S_T}:{S_T+1}], vcc")
        a(f"v_cmp_nge_f32 vcc, 0x4b800000, v{V_T1}")
        a(f"s_or_b64 s[{S_T}:{S_T+1}], s[{S_T}:{S_T+1}], vcc")
        a(f"v_cmp_u_f32 vcc, v{V_T2}, v{V_T2}")
        a(f"s_or_b64 s[{S_T}:{S_T+1}], s[{S_T}:{S_T+1}], vcc")
        if self.force_slow: a("s_branch L_slow")
        a("s_cbranch_scc1 L_slow")
        a("L_norm:")
        BO, BX = V_Q, V_S
        for qt in range(3):
            a(f"v_rcp_f32 v{V_L+4*qt}, v{V_L+4*qt}")
        a(f"s_mul_i32 s{S_T}, s{S_W}, 12288"); a(f"s_add_u32 s{S_T}, s{S_T}, {L_EX}")
        a(f"s_xor_b32 s{S_T+1}, s{S_W}, 2"); a(f"s_mul_i32 s{S_T+1}, s{S_T+1}, 12288"); a(f"s_add_u32 s{S_T+1}, s{S_T+1}, {L_EX}")
        for qt in range(3):
            a(f"v_mov_b32 v{V_L+4*qt+1}, v{V_L+4*qt}")
        a(f"v_lshlrev_b32 v{V_T0}, 4, v{L}")
        a(f"v_add_u32 v{V_T1}, s{S_T+1}, v{V_T0}")
        a(f"v_add_u32 v{V_T0}, s{S_T}, v{V_T0}")
        for ks in range(4):
            for qt in range(3):
                ta = V_O + ((2 * ks) * 3 + qt) * 4; tb = V_O + ((2 * ks + 1) * 3 + qt) * 4
                for b in (ta, ta + 2, tb, tb + 2):
                    a(f"v_pk_mul_f32 {vr(b,2)}, {vr(b,2)}, {vr(V_L+4*qt,2)}")
                d = BO + (ks * 3 + qt) * 4
                a(f"v_cvt_pk_bf16_f32 v{d}, v{ta}, v{ta+1}"); a(f"v_cvt_pk_bf16_f32 v{d+1}, v{ta+2}, v{ta+3}")
                a(f"v_cvt_pk_bf16_f32 v{d+2}, v{tb}, v{tb+1}"); a(f"v_cvt_pk_bf16_f32 v{d+3}, v{tb+2}, v{tb+3}")
                a(f"ds_write_b128 v{V_T0}, {vr(d)} offset:{(ks*3+qt)*1024}")
        a(f"v_and_b32 v{V_A0}, 3, v{L}"); a(f"v_lshlrev_b32 v{V_A0}, 3, v{V_A0}")
        a(f"v_bfe_u32 v{V_A1}, v{L}, 2, 3"); a(f"v_lshl_add_u32 v{V_A0}, v{V_A1}, 6, v{V_A0}")
        a(f"v_bfe_u32 v{V_A1}, v{L}, 4, 1"); a(f"v_lshl_add_u32 v{V_A0}, v{V_A1}, 5, v{V_A0}")
        a(f"v_lshrrev_b32 v{V_A1}, 5, v{L}"); a(f"v_lshl_add_u32 v{V_A0}, v{V_A1}, 10, v{V_A0}")
        a(f"s_lshr_b32 s{S_T}, s{S_W}, 1"); a(f"s_mul_i32 s{S_T}, s{S_T}, {16384+512}")
        a(f"v_add_u32 v{V_A0}, s{S_T}, v{V_A0}")
        a(f"v_xor_b32 v{V_A1}, 32, v{V_A0}")
        a(f"v_xor_b32 v{V_A2}, 0x4000, v{V_A0}")
        a(f"v_xor_b32 v{V_A3}, 0x4000, v{V_A1}")
        VST = V_T2
        a(f"s_mul_i32 s{S_T}, s{S_W}, 3072")
        a(f"v_lshlrev_b32 v{VST}, 4, v{L}"); a(f"v_add_u32 v{VST}, s{S_T}, v{VST}")
        a(f"s_mov_b32 s62, s{S_PART}")
        a(f"s_mov_b32 s{S_SLOT}, 0")
        a(f"s_mov_b32 s60, {(-4*32768) & 0xffffffff}"); a("s_mov_b32 s61, 32768")
        a("s_waitcnt lgkmcnt(0)")
        st.q = []
        ACC = V_O
        PK = V_O + 24
        for r in range(0): pass
        def order(n):
            if n == 0: return [(tl, oh, ks) for oh in range(2) for tl in range(2) for ks in range(4)]
            return [(tl, oh, ks) for tl in range(2) for oh in range(2) for ks in range(4)]
        seq = [(n,) + f for n in range(10) for f in order(n)]
        def rd(i):
            n, tl, oh, ks = seq[i]
            fr = V_FR + 4 * (i % 4)
            ad = [V_A0, V_A1, V_A2, V_A3][oh * 2 + tl]
            return [('R', f"ds_read_b64_tr_b16 {vr(fr,2)}, v{ad} offset:{ks*4096}", (i, 0)),
                    ('R', f"ds_read_b64_tr_b16 {vr(fr+2,2)}, v{ad} offset:{ks*4096+2048}", i)]
        def cvts(tl):
            o = []
            for qt in range(3):
                s = ACC + 12 * tl + 4 * qt
                for h in range(2): o.append(f"v_cvt_pk_bf16_f32 v{PK + qt*4 + tl*2 + h}, v{s+2*h}, v{s+2*h+1}")
            return o
        def stores():
            return [f"buffer_store_dwordx4 {vr(PK+4*qt)}, v{VST}, s[{S_WS}:{S_WS+3}], s62 offen offset:{qt*1024}{self.spol}" for qt in range(3)] + \
                   ["s_add_u32 s62, s62, 12288"]
        pro = [('X', "s_barrier")]
        for i in range(4): pro += rd(i)
        self.emit(st.run(pro))
        self.stamp(3)
        if self.stamps: st.q = []
        steps = []
        for n in range(9):
            ops = []; pend = []
            extra = {}
            if n == 0:
                xr = [('R', f"ds_read_b128 {vr(BX + 4*j)}, v{V_T1} offset:{j*1024}", ('BX', j)) for j in range(12)]
                for j in range(12): extra.setdefault(j // 2, []).append(xr[j])
                ca = cvts(0)
                for j in range(6): extra.setdefault(13 + j // 2, []).append(('X', ca[j]))
            else:
                cb = cvts(1); ca = cvts(0); ss = stores()
                for j in range(6): extra.setdefault(1 + j // 2, []).append(('X', cb[j]))
                for j in range(4): extra.setdefault(4 + j, []).append(('X', ss[j]))
                for j in range(6): extra.setdefault(9 + j // 2, []).append(('X', ca[j]))
            for f in range(16):
                i = n * 16 + f
                _, tl, oh, ks = seq[i]
                fr = V_FR + 4 * (i % 4)
                first = (oh == 0 and ks == 0)
                for qt in range(3):
                    d = ACC + 12 * tl + 4 * qt
                    B = (BO if oh == 0 else BX) + (ks * 3 + qt) * 4
                    needs = [i] + ([('BX', ks * 3 + qt)] if oh == 1 else [])
                    ops.append(('M', f"{MF} {vr(d)}, {vr(fr)}, {vr(B)}, {'0' if first else vr(d)}", needs))
                    if qt == 0 and pend: ops.append(pend.pop(0))
                    if qt == 1:
                        ops += extra.get(f, [])
                        if f == 11: ops += [('X', s) for s in self.ring_adv(5, 0, 0)]
                        if f == 12:
                            ops.append(('X', "s_barrier"))
                            ops += [('X', f"v_add_u32 v{r}, s{S_D0}, v{r}") for r in (V_A0, V_A1, V_A2, V_A3)]
                    if qt == 2:
                        nr = rd(i + 4)
                        ops.append(nr[0])
                        if f == 15: ops.append(nr[1])
                        else: pend.append(nr[1])
            steps.append(st.run(ops))
        self.emit(steps[0])
        self.roll(steps, 1, 1, 8, "L_p3", allow_first=True)
        a("s_nop 7"); a("s_nop 1")
        self.emit(cvts(1)); self.emit(stores())
        a("s_waitcnt lgkmcnt(0)")

    def write_stamps(self, n):
        a = self.a
        if not self.stamps: return
        a("s_waitcnt vmcnt(0)")
        self.stamp(n - 1)
        a(f"s_cmp_lg_u32 s{S_W}, 0")
        a("s_cbranch_scc1 L_done")
        a("s_mov_b64 exec, 1")
        if self.dbg:
            words = [1, 2, 3, 5, 6, 7, 9, 10, 11, 13, 14, 15]
            a("v_mov_b32 v1, 0")
            a(f"s_not_b32 s{S_T}, s{S_ST}")
            a(f"v_mov_b32 v4, s{S_T}")
            a(f"buffer_atomic_umax v4, v1, s[{S_DBG}:{S_DBG+3}], 0 offen offset:{4*words[0]} sc1")
            for j in range(n):
                a(f"v_mov_b32 v{5+j}, s{S_ST+2*j}")
                a(f"buffer_atomic_umax v{5+j}, v1, s[{S_DBG}:{S_DBG+3}], 0 offen offset:{4*words[1+j]} sc1")
            return
        a(f"s_mul_i32 s{S_T}, s2, {8*n}")
        a(f"s_add_u32 s{S_T}, s{S_T}, {STAMP_OFF}")
        a(f"v_mov_b32 v1, s{S_T}")
        for j in range(n):
            a(f"v_mov_b32 v4, s{S_ST+2*j}"); a(f"v_mov_b32 v5, s{S_ST+2*j+1}")
            a(f"buffer_store_dwordx2 v[4:5], v1, s[{S_WS}:{S_WS+3}], 0 offen offset:{8*j}")
            a("s_nop 1")

    def reducer(self):
        a = self.a
        a("L_fin:")
        a("s_waitcnt vmcnt(0)")
        a("s_barrier")
        self.stamp(4)
        a("L_red:")
        a(f"s_lshl_b32 s{S_T}, s{S_W}, 6")
        a(f"v_add_u32 v0, s{S_T}, v{V_LANE}")
        a(f"s_mul_i32 s{S_T}, s{S_H}, 432")
        a(f"v_add_u32 v1, s{S_T}, v0")
        a("v_lshlrev_b32 v2, 4, v1")
        a(f"s_mul_i32 s{S_T+1}, s{S_B}, {16*PART_BYTES}")
        a("v_cmp_gt_u32 vcc, 432, v0")
        a("s_barrier")
        self.stamp(5)
        a("s_and_b64 exec, exec, vcc")
        a("s_cbranch_execz L_done")
        for p in range(16):
            a(f"buffer_load_dwordx4 {vr(16+4*p)}, v2, s[{S_WS}:{S_WS+3}], s{S_T+1} offen sc0 sc1")
            if p < 15: a(f"s_add_u32 s{S_T+1}, s{S_T+1}, {PART_BYTES}")
        a("v_lshrrev_b32 v3, 6, v1")
        a("v_mul_u32_u24 v4, 0x5556, v3"); a("v_lshrrev_b32 v4, 16, v4")
        a("v_mul_u32_u24 v5, 3, v4"); a("v_sub_u32 v5, v3, v5")
        a("v_and_b32 v6, 1, v4"); a("v_mul_u32_u24 v6, 48, v6")
        a("v_lshl_add_u32 v6, v5, 4, v6")
        a("v_and_b32 v7, 15, v1"); a("v_add_u32 v6, v6, v7")
        a("v_mul_u32_u24 v6, 1152, v6")
        a("v_lshrrev_b32 v7, 1, v4"); a("v_lshl_add_u32 v6, v7, 6, v6")
        a("v_bfe_u32 v7, v1, 4, 2"); a("v_lshl_add_u32 v6, v7, 3, v6")
        a(f"s_mov_b32 s{S_T}, 0xffff0000")
        for p in range(16):
            a(f"s_waitcnt vmcnt({15-p})")
            for r in range(4):
                src = 16 + 4 * p + r
                if p == 0:
                    a(f"v_lshlrev_b32 v{8+2*r}, 16, v{src}"); a(f"v_and_b32 v{9+2*r}, s{S_T}, v{src}")
                else:
                    a(f"v_lshlrev_b32 v2, 16, v{src}"); a(f"v_and_b32 v3, s{S_T}, v{src}")
                    a(f"v_add_f32 v{8+2*r}, v{8+2*r}, v2"); a(f"v_add_f32 v{9+2*r}, v{9+2*r}, v3")
        for r in range(4): a(f"v_cvt_pk_bf16_f32 v{16+r}, v{8+2*r}, v{9+2*r}")
        a(f"buffer_store_dwordx2 v[16:17], v6, s[{S_OUT}:{S_OUT+3}], s{S_XOFF} offen")
        a(f"buffer_store_dwordx2 v[18:19], v6, s[{S_OUT}:{S_OUT+3}], s{S_XOFF} offen offset:32")

    def build(self):
        a = self.a
        k1 = NAME + "_kernel"
        header(a, [(k1, 256, 512, 160 * 1024)])
        kstart(a, k1)
        self.prologue()
        st = Stream()
        self.phase1(st)
        self.phase2(st)
        self.phase3(st)
        self.reducer()
        self.write_stamps(7)
        a("s_branch L_done")
        self.slowpath()
        self.loader()
        a("L_done:")
        a("s_endpgm")
        kdesc(a, k1)
        return a.text()

if __name__ == "__main__":
    import argparse
    ap = argparse.ArgumentParser()
    ap.add_argument("-o", default="v1.s")
    ap.add_argument("--stamps", action="store_true")
    ap.add_argument("--slow", action="store_true")
    ap.add_argument("--dbg", action="store_true")
    ap.add_argument("--delay", type=int, default=0)
    ap.add_argument("--kvpol", default=" nt")
    ap.add_argument("--spol", default=" sc0 sc1")
    x = ap.parse_args()
    g = Gen(stamps=x.stamps or x.dbg, kvpol=x.kvpol, spol=x.spol, force_slow=x.slow, dbg=x.dbg, delay=x.delay)
    open(x.o, "w").write(g.build())
```

```python
import sys, struct
from asmlib import *

def f32hex(x):
    return "0x%08x" % struct.unpack("<I", struct.pack("<f", x))[0]

MF = "v_mfma_f32_16x16x32_bf16"
def vr(b, n=4): return f"v[{b}:{b+n-1}]"

class Stream:
    def __init__(self):
        self.q = []
    def run(self, ops):
        out = []
        for op in ops:
            k = op[0]
            if k == 'R':
                out.append(op[1]); self.q.append(op[2])
            elif k in ('M', 'W'):
                needs = op[2]
                idx = -1
                for i, t in enumerate(self.q):
                    if t in needs: idx = i
                if idx >= 0:
                    n = len(self.q) - 1 - idx
                    assert n <= 15
                    out.append(f"s_waitcnt lgkmcnt({n})")
                    self.q = self.q[idx+1:]
                if op[1]: out.append(op[1])
            elif k == 'Z':
                out.append("s_waitcnt lgkmcnt(0)"); self.q = []
            else:
                out.append(op[1])
        return out

V_O = 0
V_Q = 96
V_S = 144
V_P = 192
V_L = 216
V_ONE = 228
V_FR = 232
V_A0, V_A1, V_A2, V_A3 = 248, 249, 250, 251
V_LANE = 252
V_T0, V_T1, V_T2 = 253, 254, 255

S_X, S_K, S_V, S_WQ, S_WO, S_WS, S_OUT = 20, 24, 28, 32, 36, 40, 44
S_B, S_H, S_W = 48, 49, 50
S_CNT, S_SLOT, S_D0, S_D1 = 51, 52, 53, 54
S_SC = 56
S_T = 58
S_KVOFF, S_XOFF, S_WQOFF, S_WOOFF, S_LW, S_PART = 64, 65, 66, 67, 68, 69
S_ST = 72

L_X = 96 * 1024
L_EX = 96 * 1024
PART_BYTES = 110592
STAMP_OFF = 0x8000000
FLAG_OFF = 0x4000000
S_DBG = 96

class Gen:
    def __init__(self, stamps=False, kvpol=" nt", spol=" sc0 sc1", force_slow=False, dbg=False, delay=0, pad=0):
        self.dbg = dbg; self.delay = delay; self.pad = pad
        self.a = Asm(); self.stamps = stamps; self.kvpol = kvpol; self.spol = spol
        self.force_slow = force_slow
        self.nst = 0
    def stamp(self, i):
        if self.stamps:
            self.a(f"s_memrealtime s[{S_ST+2*i}:{S_ST+2*i+1}]")
            self.a("s_waitcnt lgkmcnt(0)")
    def emit(self, lines):
        for l in lines: self.a(l)

    def prologue(self):
        a = self.a
        a("s_cmp_ge_u32 s2, 256")
        a("s_cbranch_scc1 L_done")
        a("s_load_dwordx16 s[4:19], s[0:1], 0")
        if self.stamps or self.pad: a(f"s_memrealtime s[{S_ST}:{S_ST+1}]")
        a(f"v_lshrrev_b32 v1, 6, v0")
        a(f"v_and_b32 v{V_LANE}, 63, v0")
        a(f"s_and_b32 s{S_T}, s2, 1"); a(f"s_lshl_b32 s{S_T}, s{S_T}, 3")
        a(f"s_bfe_u32 s{S_T+1}, s2, 0x30003"); a(f"s_add_u32 s{S_B}, s{S_T}, s{S_T+1}")
        a(f"v_readfirstlane_b32 s{S_W}, v1")
        a(f"s_bfe_u32 s{S_T}, s2, 0x20001"); a(f"s_lshl_b32 s{S_T}, s{S_T}, 2")
        a(f"s_lshr_b32 s{S_T+1}, s2, 6"); a(f"s_add_u32 s{S_H}, s{S_T}, s{S_T+1}")
        a(f"s_lshl_b32 s{S_T}, s{S_B}, 4"); a(f"s_add_u32 s{S_T}, s{S_T}, s{S_H}")
        a(f"s_lshl_b32 s{S_KVOFF}, s{S_T}, 17")
        a(f"s_mul_i32 s{S_PART}, s{S_T}, {PART_BYTES}")
        a(f"s_mul_i32 s{S_XOFF}, s{S_B}, 110592")
        a(f"s_lshl_b32 s{S_WQOFF}, s{S_H}, 9")
        a(f"s_mul_i32 s{S_WOOFF}, s{S_H}, {256*1152}")
        a("s_waitcnt lgkmcnt(0)")
        srd(a, S_X, 4, 16*96*576*2)
        srd(a, S_WQ, 10, 576*4096*2)
        srd(a, S_K, 6, 16*16*512*128*2)
        srd(a, S_V, 8, 16*16*512*128*2)
        srd(a, S_WO, 12, 4096*576*2)
        srd(a, S_WS, 18, 0x10000000)
        srd(a, S_OUT, 14, 16*96*576*2)
        srd(a, S_DBG, 16, 256)
        if self.delay:
            a("s_memrealtime s[60:61]"); a("s_waitcnt lgkmcnt(0)")
            a(f"s_add_u32 s60, s60, {self.delay}")
            a("L_delay:")
            a("s_memrealtime s[62:63]"); a("s_waitcnt lgkmcnt(0)")
            a("s_sub_u32 s62, s62, s60"); a("s_cmp_lt_i32 s62, 0"); a("s_cbranch_scc1 L_delay")
        a(f"s_cmp_ge_u32 s{S_W}, 4")
        a("s_cbranch_scc1 L_loader")

    def loader(self):
        a = self.a
        a("L_loader:")
        L = V_LANE
        vWq, vX, vK, vV, vWo, t0, t1, t2 = 1, 2, 3, 4, 5, 6, 7, 8
        a(f"s_sub_u32 s{S_LW}, s{S_W}, 4")
        lw = S_LW
        a(f"v_and_b32 v{t0}, 3, v{L}")
        a(f"v_bfe_u32 v{t1}, v{L}, 2, 2")
        a(f"v_lshrrev_b32 v{t2}, 4, v{L}")
        a(f"s_and_b32 s{S_T}, s{lw}, 1")
        a(f"v_xor_b32 v{vWq}, s{S_T}, v{t0}")
        a(f"v_lshlrev_b32 v{vWq}, 4, v{vWq}")
        a(f"v_lshl_add_u32 v{vWq}, v{t2}, 6, v{vWq}")
        a(f"v_lshl_add_u32 v{vWq}, v{t1}, 13, v{vWq}")
        a(f"s_lshl_b32 s{S_T+1}, s{lw}, 16")
        a(f"v_add_u32 v{vWq}, s{S_T+1}, v{vWq}")
        a(f"v_and_b32 v9, 1, v{t2}")
        a(f"s_lshl_b32 s{S_T+1}, s{S_T}, 1")
        a(f"v_add_u32 v9, s{S_T+1}, v9")
        a(f"v_sub_u32 v9, 0, v9")
        a(f"v_and_b32 v9, 3, v9")
        a(f"v_xor_b32 v9, v9, v{t0}")
        a(f"v_lshlrev_b32 v9, 4, v9")
        a(f"v_lshrrev_b32 v10, 5, v{L}")
        a(f"v_lshl_add_u32 v9, v10, 6, v9")
        a(f"v_bfe_u32 v11, v{L}, 2, 3")
        a(f"s_lshl_b32 s{S_T+1}, s{lw}, 3")
        a(f"v_add_u32 v11, s{S_T+1}, v11")
        a(f"s_movk_i32 s{S_T+2}, 1152")
        a(f"v_mad_u32_u24 v{vX}, v11, s{S_T+2}, v9")
        a(f"v_and_b32 v9, 1, v{t2}")
        a(f"v_lshlrev_b32 v9, 1, v9")
        a(f"v_xor_b32 v9, v9, v{t0}")
        a(f"v_lshlrev_b32 v9, 4, v9")
        a(f"v_lshl_add_u32 v9, v10, 6, v9")
        a(f"v_mad_u32_u24 v{vWo}, v11, s{S_T+2}, v9")
        a(f"s_sub_u32 s{S_T+1}, 0, s{lw}"); a(f"s_and_b32 s{S_T+1}, s{S_T+1}, 3")
        a(f"v_lshlrev_b32 v9, 8, v{t1}")
        a(f"v_lshl_add_u32 v9, v{t2}, 6, v9")
        a(f"s_lshl_b32 s{S_T+2}, s{lw}, 10")
        a(f"v_add_u32 v9, s{S_T+2}, v9")
        a(f"v_xor_b32 v10, s{S_T+1}, v{t0}")
        a(f"v_lshl_add_u32 v{vK}, v10, 4, v9")
        a(f"s_lshl_b32 s{S_T+1}, s{S_T}, 1")
        a(f"v_xor_b32 v10, s{S_T+1}, v{t0}")
        a(f"v_lshl_add_u32 v{vV}, v10, 4, v9")
        a(f"s_lshl_b32 s70, s{lw}, 10"); a(f"s_lshl_b32 s71, s{lw}, 12")

        issued = []
        def piece(item, ldsbase_s, ldsimm, voff, srd_, sbase, gimm, pol):
            a(f"s_add_u32 m0, s{ldsbase_s}, {ldsimm}")
            a(f"s_add_u32 s{S_T}, s{sbase}, {gimm}")
            a(f"buffer_load_dwordx4 v{voff}, s[{srd_}:{srd_+3}], s{S_T} offen{pol} lds")
            issued.append(item)
        def load(item):
            kind, t = item
            if kind == 'wq':
                for p in range(4):
                    piece(item, 71, (t % 6) * 16384 + p * 1024, vWq, S_WQ, S_WQOFF, t * 32 * 8192 + (p >> 1) * 32768 + (p & 1) * 256, "")
            elif kind == 'x':
                for p in range(3):
                    piece(item, 70, L_X + (t % 3) * 12288 + p * 4096, vX, S_X, S_XOFF, t * 128 + p * 32 * 1152, "")
            elif kind == 'kv':
                if t < 16:
                    for p in range(2):
                        piece(item, 70, (t % 6) * 16384 + p * 4096, vK, S_K, S_KVOFF, t * 8192 + p * 4096, self.kvpol)
                if t >= 2:
                    for p in range(2):
                        piece(item, 70, (t % 6) * 16384 + 8192 + p * 4096, vV, S_V, S_KVOFF, (t - 2) * 8192 + p * 4096, self.kvpol)
            elif kind == 'wo':
                nb, hd = t >> 1, t & 1
                for p in range(4):
                    piece(item, 70, (nb % 5) * 32768 + hd * 16384 + p * 4096, vWo, S_WO, S_WOOFF, (hd * 128 + p * 32) * 1152 + nb * 128, "")
        bars = []
        for t in range(18): bars.append((f"B{t}", [('wq', t)] + ([('x', t // 2)] if t % 2 == 0 else [])))
        bars.append(("B18", []))
        for t in range(18): bars.append((f"C{t}", [('kv', t)]))
        for n in range(9): bars.append((f"D{n}", [('wo', 2 * n), ('wo', 2 * n + 1)]))
        bars.append(("D9", []))
        bi = {n: i for i, (n, _) in enumerate(bars)}
        order = []
        for t in range(18):
            if t % 2 == 0:
                c = t // 2
                order.append((('x', c), -1 if c < 3 else bi[f"B{2*(c-3)+3}"]))
            order.append((('wq', t), -1 if t < 6 else bi[f"B{t-4}"]))
        for t in range(18):
            if t < 5: rel = bi[f"B{t+14}"]
            elif t == 5: rel = bi["C0"]
            else: rel = bi[f"C{t-4}"]
            order.append((('kv', t), rel))
        for h in range(18):
            nb, hd = h >> 1, h & 1
            if nb < 2: rel = bi[f"C{12 + h + 2}"]
            elif nb == 2: rel = bi["D0"]
            elif nb < 5: rel = bi["D1"]
            else: rel = bi[f"D{nb-3}"]
            order.append((('wo', h), rel))
        pos = 0
        def issue_ready(cur):
            nonlocal pos
            while pos < len(order) and order[pos][1] <= cur:
                load(order[pos][0]); pos += 1
        issue_ready(-1)
        lastwait = None
        for i, (name, needs) in enumerate(bars):
            if needs:
                idx = max(j for j, it in enumerate(issued) if it in needs)
                for nd in needs: assert nd in issued, (name, nd)
                n = len(issued) - 1 - idx
                assert n <= 63
                a(f"s_waitcnt vmcnt({n})")
            a("s_barrier")
            if self.stamps and name in ("B0", "C0", "D0"):
                pass
            issue_ready(i)
        assert pos == len(order)
        a(f"s_cmp_lg_u32 s{S_W}, 4")
        a("s_cbranch_scc1 L_fin")
        a(f"s_lshl_b32 s{S_T+1}, s{S_B}, 4")
        a("v_mov_b32 v1, 0")
        a(f"s_mov_b32 s{S_CNT}, 0")
        a("L_poll0:")
        a(f"buffer_load_dword v2, v1, s[{S_DBG}:{S_DBG+3}], s{S_T+1} offen sc0 sc1")
        a("s_waitcnt vmcnt(0)")
        a(f"v_readfirstlane_b32 s{S_T}, v2")
        a(f"s_add_u32 s{S_CNT}, s{S_CNT}, 1")
        a(f"s_cmp_ge_u32 s{S_T}, 16")
        a("s_cbranch_scc1 L_poll0_ok")
        a(f"s_cmp_lt_u32 s{S_CNT}, 0x100000")
        a("s_cbranch_scc1 L_poll0")
        a("L_poll0_ok:")
        a(f"s_lshr_b32 s{S_T}, s{S_KVOFF}, 10")
        a(f"s_add_u32 s{S_T}, s{S_T}, {FLAG_OFF}")
        a(f"s_lshl_b32 s{S_T+1}, s{S_B}, 11")
        a(f"s_add_u32 s{S_T+1}, s{S_T+1}, {FLAG_OFF}")
        a(f"v_and_b32 v3, 15, v{V_LANE}"); a("v_lshlrev_b32 v3, 7, v3")
        a("v_mov_b32 v2, 1")
        a("s_barrier")
        a("s_mov_b64 exec, 1")
        a(f"buffer_store_dword v2, v1, s[{S_WS}:{S_WS+3}], s{S_T} offen sc0 sc1")
        a("s_mov_b64 exec, 0xffff")
        a(f"s_mov_b32 s{S_CNT}, 0")
        a("L_poll1:")
        a(f"buffer_load_dword v4, v3, s[{S_WS}:{S_WS+3}], s{S_T+1} offen sc0 sc1")
        a("s_waitcnt vmcnt(0)")
        a("v_cmp_ne_u32 vcc, 1, v4")
        a(f"s_add_u32 s{S_CNT}, s{S_CNT}, 1")
        a("s_cbranch_vccz L_poll1_ok")
        a(f"s_cmp_lt_u32 s{S_CNT}, 0x100000")
        a("s_cbranch_scc1 L_poll1")
        a("L_poll1_ok:")
        a("s_mov_b64 exec, -1")
        a("s_branch L_red")
        self.nbars = len(bars)

    def ring_adv(self, nslots, dpos, dneg, dpos2=None, dneg2=None):
        o = [f"s_add_u32 s{S_SLOT}, s{S_SLOT}, 1",
             f"s_cmp_eq_u32 s{S_SLOT}, {nslots}",
             f"s_cselect_b32 s{S_SLOT}, 0, s{S_SLOT}",
             f"s_cselect_b32 s{S_D0}, s60, s61"]
        if dpos2 is not None: o.append(f"s_cselect_b32 s{S_D1}, s62, s63")
        return o

    def phase1(self, st):
        a = self.a
        L = V_LANE
        a(f"s_lshr_b32 s{S_T}, s{S_W}, 1")
        a(f"s_and_b32 s{S_T+1}, s{S_W}, 1")
        a(f"v_lshrrev_b32 v{V_T0}, 4, v{L}")
        a(f"v_and_b32 v{V_T1}, 3, v{L}")
        a(f"v_and_b32 v{V_T2}, 1, v{V_T0}")
        a(f"v_xor_b32 v{V_A0}, v{V_T1}, v{V_T2}")
        a(f"v_lshlrev_b32 v{V_A0}, 4, v{V_A0}")
        a(f"v_lshl_add_u32 v{V_A0}, v{V_T0}, 12, v{V_A0}")
        a(f"v_and_b32 v{V_A1}, 1, v{V_T1}")
        a(f"v_lshl_add_u32 v{V_A0}, v{V_A1}, 3, v{V_A0}")
        a(f"v_bfe_u32 v{V_A1}, v{L}, 2, 2")
        a(f"v_lshl_add_u32 v{V_A0}, v{V_A1}, 6, v{V_A0}")
        a(f"s_lshl_b32 s{S_T+2}, s{S_T}, 10")
        a(f"v_add_u32 v{V_A0}, s{S_T+2}, v{V_A0}")
        a(f"v_xor_b32 v{V_A1}, 8, v{V_A0}")
        a(f"v_bfe_u32 v{V_A2}, v{L}, 2, 2")
        a(f"v_sub_u32 v{V_A2}, 0, v{V_A2}")
        a(f"v_and_b32 v{V_A2}, 3, v{V_A2}")
        a(f"v_xor_b32 v{V_A2}, v{V_A2}, v{V_T0}")
        a(f"v_lshlrev_b32 v{V_A2}, 4, v{V_A2}")
        a(f"v_mov_b32 v{V_A3}, v{V_A2}")
        a(f"v_and_b32 v{V_T1}, 7, v{L}")
        a(f"v_lshl_add_u32 v{V_A2}, v{V_T1}, 6, v{V_A2}")
        a(f"v_bfe_u32 v{V_T1}, v{L}, 3, 1")
        a(f"v_lshl_add_u32 v{V_A2}, v{V_T1}, 10, v{V_A2}")
        a(f"s_mul_i32 s{S_T+2}, s{S_T+1}, 6144")
        a(f"s_add_u32 s{S_T+2}, s{S_T+2}, {L_X}")
        a(f"v_add_u32 v{V_A2}, s{S_T+2}, v{V_A2}")
        for r in range(96): a(f"v_mov_b32 v{V_O+r}, 0")
        a(f"s_mov_b32 s{S_SLOT}, 0")
        a(f"s_mov_b32 s60, {-65536 & 0xffffffff}"); a("s_mov_b32 s61, 32768")
        a(f"s_mov_b32 s62, {-24576 & 0xffffffff}"); a("s_mov_b32 s63, 12288")
        XB = V_S
        def rdA(t, f):
            dblk, tl = f >> 1, f & 1
            fr = V_FR + 4 * (f % 4)
            ad = V_A0 if tl == 0 else V_A1
            base = (t & 1) * 16384 + dblk * 256
            return [('R', f"ds_read_b64_tr_b16 {vr(fr,2)}, v{ad} offset:{base}", ('A', t, f, 0)),
                    ('R', f"ds_read_b64_tr_b16 {vr(fr+2,2)}, v{ad} offset:{base+2048}", ('A', t, f))]
        def rdX(t, qt):
            return ('R', f"ds_read_b128 {vr(XB + 12*(t&1) + 4*qt)}, v{V_A2} offset:{qt*2048 + (t&1)*512}", ('X', t, qt))
        a(f"s_cmp_lg_u32 s{S_W}, 0")
        a("s_cbranch_scc1 L_nostart")
        a(f"s_lshr_b32 s{S_T}, s{S_KVOFF}, 10")
        a(f"s_add_u32 s{S_T}, s{S_T}, {FLAG_OFF}")
        a(f"s_lshl_b32 s{S_T+1}, s{S_B}, 4")
        a(f"v_mov_b32 v{V_T0}, 0"); a(f"v_mov_b32 v{V_T1}, 1")
        a("s_mov_b64 exec, 1")
        a(f"buffer_store_dword v{V_T0}, v{V_T0}, s[{S_WS}:{S_WS+3}], s{S_T} offen sc0 sc1")
        a("s_waitcnt vmcnt(0)")
        a(f"buffer_atomic_add v{V_T1}, v{V_T0}, s[{S_DBG}:{S_DBG+3}], s{S_T+1} offen sc1")
        a("s_mov_b64 exec, -1")
        a("L_nostart:")
        pro = [('X', "s_barrier")]
        pro += [rdX(0, q) for q in range(3)]
        for f in range(4): pro += rdA(0, f)
        self.emit(st.run(pro))
        self.stamp(1)
        st.q = [] if self.stamps else st.q
        steps = []
        for t in range(18):
            ops = []
            pend = []
            for f in range(8):
                fr = V_FR + 4 * (f % 4)
                for qt in range(3):
                    acc = V_O + (f * 3 + qt) * 4
                    ops.append(('M', f"{MF} {vr(acc)}, {vr(fr)}, {vr(XB + 12*(t&1) + 4*qt)}, {vr(acc)}", [('A', t, f), ('X', t, qt)]))
                    if qt == 0 and pend: ops.append(pend.pop(0))
                    if qt == 1:
                        if f == 2 and (t & 1): ops += [('X', s) for s in self.ring_adv(3, 0, 0, 0, 0)]
                        if f == 3:
                            ops.append(('X', "s_barrier"))
                            if t & 1: ops.append(('X', f"v_add_u32 v{V_A2}, s{S_D1}, v{V_A2}"))
                            ops.append(rdX(t + 1, 0))
                        if f == 4:
                            if t & 1:
                                ops += [('X', f"v_add_u32 v{V_A0}, s{S_D0}, v{V_A0}"), ('X', f"v_add_u32 v{V_A1}, s{S_D0}, v{V_A1}")]
                            ops += [rdX(t + 1, 1), rdX(t + 1, 2)]
                    if qt == 2:
                        nr = rdA(t, f + 4) if f < 4 else rdA(t + 1, f - 4)
                        ops.append(nr[0])
                        if f == 7: ops.append(nr[1])
                        else: pend.append(nr[1])
            steps.append(st.run(ops))
        self.roll(steps, 0, 2, 9, "L_p1", allow_first=True)
        a("s_nop 7")
        c = f32hex(128 ** -0.5 * 1.4426950408889634)
        a(f"s_mov_b32 s{S_SC}, {c}"); a(f"s_mov_b32 s{S_SC+1}, {c}")
        a("s_mov_b32 vcc_lo, 0xffff0000"); a("s_mov_b32 vcc_hi, 0xffff0000")
        tmp = V_P
        k = 0
        for s in range(4):
            for qt in range(3):
                t0 = V_O + ((2 * s) * 3 + qt) * 4; t1 = V_O + ((2 * s + 1) * 3 + qt) * 4
                for b in (t0, t0 + 2, t1, t1 + 2):
                    a(f"v_pk_mul_f32 {vr(b,2)}, {vr(b,2)}, s[{S_SC}:{S_SC+1}]")
                T = tmp + 4 * (k % 4); k += 1
                a(f"v_cvt_pk_bf16_f32 v{T}, v{t0}, v{t0+1}"); a(f"v_cvt_pk_bf16_f32 v{T+1}, v{t0+2}, v{t0+3}")
                a(f"v_cvt_pk_bf16_f32 v{T+2}, v{t1}, v{t1+1}"); a(f"v_cvt_pk_bf16_f32 v{T+3}, v{t1+2}, v{t1+3}")
                q = V_Q + (qt * 4 + s) * 4
                a(f"v_cndmask_b32 v{q}, v{T}, v{T+2}, vcc"); a(f"v_cndmask_b32 v{q+1}, v{T+1}, v{T+3}, vcc")
                a(f"v_cndmask_b32 v{q+2}, v{T+2}, v{T}, vcc"); a(f"v_cndmask_b32 v{q+3}, v{T+3}, v{T+1}, vcc")

    def roll(self, steps, start, period, trips, label, allow_first=False):
        a = self.a
        body = sum(steps[start + period: start + 2 * period], []) if trips > 1 else sum(steps[start:start + period], [])
        for k in range(trips):
            b = sum(steps[start + k * period: start + (k + 1) * period], [])
            if b != body:
                if k == 0 and allow_first:
                    nb = [x for x in body if not x.startswith("s_waitcnt")]
                    nf = [x for x in b if not x.startswith("s_waitcnt")]
                    assert nb == nf, label
                    self.check_waits(b, body, label)
                else:
                    raise AssertionError(f"loop {label} trip {k} differs")
        a(f"s_mov_b32 s{S_CNT}, {trips}")
        a(f"{label}:")
        self.emit(body)
        a(f"s_sub_u32 s{S_CNT}, s{S_CNT}, 1")
        a(f"s_cmp_lg_u32 s{S_CNT}, 0")
        a(f"s_cbranch_scc1 {label}")
    def check_waits(self, first, body, label):
        def waits(l):
            d = {}; n = 0
            for x in l:
                if x.startswith("s_waitcnt"): d[n] = int(x.split("(")[1][:-1])
                else: n += 1
            return d
        wf, wb = waits(first), waits(body)
        for p, v in wf.items():
            assert p in wb and wb[p] <= v, (label, p, v, wb.get(p))

    def kv_addrs(self, base_imm):
        a = self.a; L = V_LANE
        a(f"v_lshrrev_b32 v{V_T0}, 4, v{L}")
        a(f"v_bfe_u32 v{V_T1}, v{L}, 2, 2")
        a(f"v_sub_u32 v{V_A3}, 0, v{V_T1}")
        a(f"v_and_b32 v{V_A3}, 3, v{V_A3}")
        a(f"v_xor_b32 v{V_A3}, v{V_A3}, v{V_T0}")
        a(f"v_lshlrev_b32 v{V_A3}, 4, v{V_A3}")
        a(f"v_lshl_add_u32 v{V_A3}, v{V_T1}, 10, v{V_A3}")
        a(f"v_and_b32 v{V_T2}, 3, v{L}")
        a(f"v_lshl_add_u32 v{V_A3}, v{V_T2}, 6, v{V_A3}")
        a(f"v_lshlrev_b32 v{V_A0}, 3, v{V_T2}")
        a(f"v_lshl_add_u32 v{V_A0}, v{V_T1}, 6, v{V_A0}")
        a(f"v_lshl_add_u32 v{V_A0}, v{V_T0}, 10, v{V_A0}")
        a(f"v_and_b32 v{V_T0}, 1, v{V_T0}")
        a(f"v_lshl_add_u32 v{V_A0}, v{V_T0}, 5, v{V_A0}")
        a(f"v_xor_b32 v{V_A1}, 32, v{V_A0}")

    def phase2(self, st):
        a = self.a
        self.kv_addrs(0)
        for r in range(4): a(f"v_mov_b32 v{V_ONE+r}, 0x3f803f80")
        a(f"s_mov_b32 s{S_SLOT}, 0")
        def frags(t):
            fl = []
            if t < 16: fl += [('K', i) for i in range(8)]
            if 2 <= t < 18: fl += [('V', i) for i in range(8)]
            return fl
        seq = [(t, k, i) for t in range(18) for (k, i) in frags(t)]
        gidx = {x: n for n, x in enumerate(seq)}
        def rd(n):
            t, k, i = seq[n]
            fr = V_FR + 4 * (n % 4)
            base = (t & 1) * 16384
            if k == 'K':
                kt, s = i >> 2, i & 3
                return [('R', f"ds_read_b128 {vr(fr)}, v{V_A3} offset:{base + kt*4096 + s*256}", n)]
            ad = V_A0 if (i & 1) == 0 else V_A1
            o = base + 8192 + (i >> 1) * 256
            return [('R', f"ds_read_b64_tr_b16 {vr(fr,2)}, v{ad} offset:{o}", (n, 0)),
                    ('R', f"ds_read_b64_tr_b16 {vr(fr+2,2)}, v{ad} offset:{o+4096}", n)]
        pro = [('X', "s_barrier")]
        for n in range(4): pro += rd(n)
        self.emit(st.run(pro))
        self.stamp(2)
        if self.stamps: st.q = []
        steps = []
        zero = [f"v_mov_b32 v{V_O+r}, 0" for r in range(96)] + [f"v_mov_b32 v{V_L+r}, 0" for r in range(12)]
        for t in range(18):
            val = []
            if 1 <= t <= 16:
                sb = V_S + 24 * ((t - 1) & 1); pb = V_P + 12 * ((t - 1) & 1)
                ex = []; cv = []
                for kt in range(2):
                    for qt in range(3):
                        s0 = sb + (kt * 3 + qt) * 4
                        for h in range(2):
                            ex.append([f"v_exp_f32 v{s0+2*h}, v{s0+2*h}", f"v_exp_f32 v{s0+2*h+1}, v{s0+2*h+1}"])
                            cv.append(f"v_cvt_pk_bf16_f32 v{pb + qt*4 + kt*2 + h}, v{s0+2*h}, v{s0+2*h+1}")
                for i in range(12):
                    val += [(8, ex[i][0]), (8, ex[i][1])]
                    if i >= 1: val.append((4, cv[i - 1]))
                val.append((0, "s_nop 0"))
                val.append((4, cv[11]))
            if t == 0: val += [(4, z) for z in zero[:60]]
            if t == 1: val += [(4, z) for z in zero[60:]]
            fl = frags(t)
            groups = [(t, k, i) for (k, i) in fl]
            ops = []
            gaps = []
            pend = []
            for g in groups:
                n = gidx[g]; _, k, i = g
                fr = V_FR + 4 * (n % 4)
                for qt in range(3):
                    if k == 'K':
                        kt, s = i >> 2, i & 3
                        d = V_S + 24 * (t & 1) + (kt * 3 + qt) * 4
                        m = ('M', f"{MF} {vr(d)}, {vr(fr)}, {vr(V_Q + (qt*4+s)*4)}, {'0' if s == 0 else vr(d)}", [n])
                    else:
                        d = V_O + (i * 3 + qt) * 4
                        m = ('M', f"{MF} {vr(d)}, {vr(fr)}, {vr(V_P + 12*(t&1) + qt*4)}, {vr(d)}", [n])
                    fx = []; cost = 0
                    if qt == 0 and pend:
                        fx.append(pend.pop(0)); cost += 4
                    nn = n + 4
                    if qt == 1 and nn < len(seq) and seq[nn][0] != t and seq[nn - 1][0] == t:
                        fx.append(('X', "s_barrier")); cost += 4
                        if t & 1:
                            fx += [('X', f"v_add_u32 v{r}, s{S_D0}, v{r}") for r in (V_A3, V_A0, V_A1)]; cost += 12
                    if qt == 1 and (t & 1) and nn + 1 < len(seq) and seq[nn + 1][0] != t and seq[nn][0] == t:
                        fx += [('X', s) for s in self.ring_adv(3, 0, 0)]; cost += 8
                    if qt == 2:
                        cost += 4
                        if nn < len(seq):
                            nr = rd(nn)
                            fx.append(nr[0]); cost += 4
                            if len(nr) > 1:
                                if g == groups[-1] : fx.append(nr[1]); cost += 4
                                else: pend.append(nr[1])
                    gaps.append([m, fx, cost])
            if t >= 2:
                for qt in range(3):
                    d = V_L + 4 * qt
                    gaps.append([('M', f"{MF} {vr(d)}, {vr(V_ONE)}, {vr(V_P + 12*(t&1) + qt*4)}, {vr(d)}", []), [], 0])
            tot_val = sum(c for c, _ in val)
            free = [max(0, 8 - g[2]) for g in gaps]
            tot_free = sum(free)
            scale = max(1.0, tot_val / tot_free) if tot_free else 1
            budget = 0.0; vi = 0
            for gi, (m, fx, cost) in enumerate(gaps):
                ops.append(m); ops += fx
                budget += free[gi] * scale
                while vi < len(val) and budget >= val[vi][0] - 1e-6:
                    budget -= val[vi][0]; ops.append(('X', val[vi][1])); vi += 1
            while vi < len(val):
                ops.append(('X', val[vi][1])); vi += 1
            steps.append(st.run(ops))
        self.emit(steps[0]); self.emit(steps[1])
        self.roll(steps, 2, 2, 6, "L_p2", allow_first=True)
        for t in (14, 15, 16, 17):
            if t >= 16: a("s_nop 1")
            self.emit(steps[t])

    def slowpath(self):
        a = self.a; L = V_LANE
        a("L_slow:")
        M = V_P + 12
        KO = V_P + 16
        VO0 = V_P + 17
        VO1 = V_P + 18
        PM = V_P + 19
        a(f"v_and_b32 v{V_T0}, 15, v{L}"); a(f"v_lshrrev_b32 v{V_T1}, 4, v{L}")
        a(f"v_lshlrev_b32 v{KO}, 8, v{V_T0}"); a(f"v_lshl_add_u32 v{KO}, v{V_T1}, 4, v{KO}")
        a(f"v_bfe_u32 v{V_T0}, v{L}, 2, 2"); a(f"v_lshlrev_b32 v{VO0}, 8, v{V_T0}")
        a(f"v_lshl_add_u32 v{VO0}, v{V_T1}, 6, v{VO0}")
        a(f"v_and_b32 v{V_T0}, 3, v{L}"); a(f"v_lshl_add_u32 v{VO0}, v{V_T0}, 4, v{VO0}")
        a(f"v_xor_b32 v{VO1}, 32, v{VO0}")
        self.kv_addrs(0)
        a(f"s_mul_i32 s{S_D0}, s{S_W}, 12288"); a(f"s_add_u32 s{S_D0}, s{S_D0}, {L_EX}")
        a(f"v_add_u32 v{V_A0}, s{S_D0}, v{V_A0}"); a(f"v_add_u32 v{V_A1}, s{S_D0}, v{V_A1}")
        for q in range(3): a(f"v_mov_b32 v{M+q}, 0xff800000")
        for r in range(96): a(f"v_mov_b32 v{V_O+r}, 0")
        for r in range(12): a(f"v_mov_b32 v{V_L+r}, 0")
        def qk(kt):
            a(f"s_add_u32 s{S_T}, s61, {kt*4096}")
            for s in range(4):
                a(f"buffer_load_dwordx4 {vr(V_FR+4*s)}, v{KO}, s[{S_K}:{S_K+3}], s{S_T} offen offset:{s*64}")
            a("s_waitcnt vmcnt(0)")
            for s in range(4):
                for qt in range(3):
                    d = V_S + (kt * 3 + qt) * 4
                    a(f"{MF} {vr(d)}, {vr(V_FR+4*s)}, {vr(V_Q + (qt*4+s)*4)}, {'0' if s == 0 else vr(d)}")
            a("s_nop 7"); a("s_nop 3")
        a(f"s_mov_b32 s61, s{S_KVOFF}"); a(f"s_mov_b32 s{S_CNT}, 32")
        a("L_slow1:")
        qk(0)
        for qt in range(3):
            d = V_S + qt * 4
            a(f"v_max3_f32 v{M+qt}, v{M+qt}, v{d}, v{d+1}"); a(f"v_max3_f32 v{M+qt}, v{M+qt}, v{d+2}, v{d+3}")
        a("s_add_u32 s61, s61, 4096")
        a(f"s_sub_u32 s{S_CNT}, s{S_CNT}, 1"); a(f"s_cmp_lg_u32 s{S_CNT}, 0"); a("s_cbranch_scc1 L_slow1")
        for x in (16, 32):
            a(f"v_xor_b32 v{PM}, {x}, v{L}"); a(f"v_lshlrev_b32 v{PM}, 2, v{PM}")
            for qt in range(3): a(f"ds_bpermute_b32 v{V_S+qt}, v{PM}, v{M+qt}")
            a("s_waitcnt lgkmcnt(0)")
            for qt in range(3): a(f"v_max_f32 v{M+qt}, v{M+qt}, v{V_S+qt}")
        a(f"s_mov_b32 s61, s{S_KVOFF}"); a(f"s_mov_b32 s{S_CNT}, 16")
        a("L_slow2:")
        for p in range(8):
            a(f"s_add_u32 m0, s{S_D0}, {p*1024}")
            a(f"s_add_u32 s{S_T}, s61, {p*1024}")
            a(f"buffer_load_dwordx4 v{VO0 if p % 2 == 0 else VO1}, s[{S_V}:{S_V+3}], s{S_T} offen lds")
        qk(0); qk(1)
        for kt in range(2):
            for qt in range(3):
                d = V_S + (kt * 3 + qt) * 4
                for r in range(4): a(f"v_sub_f32 v{d+r}, v{d+r}, v{M+qt}")
                for r in range(4): a(f"v_exp_f32 v{d+r}, v{d+r}")
                a("s_nop 0")
                for h in range(2): a(f"v_cvt_pk_bf16_f32 v{V_P + qt*4 + kt*2 + h}, v{d+2*h}, v{d+2*h+1}")
        for half in range(2):
            for i4 in range(4):
                i = half * 4 + i4
                ad = V_A0 if (i & 1) == 0 else V_A1
                fr = V_FR + 4 * i4
                a(f"ds_read_b64_tr_b16 {vr(fr,2)}, v{ad} offset:{(i>>1)*256}")
                a(f"ds_read_b64_tr_b16 {vr(fr+2,2)}, v{ad} offset:{(i>>1)*256+4096}")
            a("s_waitcnt lgkmcnt(0)")
            for i4 in range(4):
                i = half * 4 + i4
                for qt in range(3):
                    d = V_O + (i * 3 + qt) * 4
                    a(f"{MF} {vr(d)}, {vr(V_FR+4*i4)}, {vr(V_P + qt*4)}, {vr(d)}")
            a("s_nop 7")
        for qt in range(3):
            d = V_L + 4 * qt
            a(f"{MF} {vr(d)}, {vr(V_ONE)}, {vr(V_P + qt*4)}, {vr(d)}")
        a("s_nop 7")
        a("s_add_u32 s61, s61, 8192")
        a(f"s_sub_u32 s{S_CNT}, s{S_CNT}, 1"); a(f"s_cmp_lg_u32 s{S_CNT}, 0"); a("s_cbranch_scc1 L_slow2")
        a("s_nop 7")
        a("s_branch L_norm")

    def phase3(self, st):
        a = self.a; L = V_LANE
        a("s_nop 7"); a("s_nop 1")
        a(f"v_min3_f32 v{V_T0}, v{V_L}, v{V_L+4}, v{V_L+8}")
        a(f"v_max3_f32 v{V_T1}, v{V_L}, v{V_L+4}, v{V_L+8}")
        a(f"v_add_f32 v{V_T2}, v{V_L}, v{V_L+4}")
        a(f"v_add_f32 v{V_T2}, v{V_T2}, v{V_L+8}")
        a(f"v_cmp_nle_f32 vcc, 0x33800000, v{V_T0}")
        a(f"s_mov_b64 s[{S_T}:{S_T+1}], vcc")
        a(f"v_cmp_nge_f32 vcc, 0x4b800000, v{V_T1}")
        a(f"s_or_b64 s[{S_T}:{S_T+1}], s[{S_T}:{S_T+1}], vcc")
        a(f"v_cmp_u_f32 vcc, v{V_T2}, v{V_T2}")
        a(f"s_or_b64 s[{S_T}:{S_T+1}], s[{S_T}:{S_T+1}], vcc")
        if self.force_slow: a("s_branch L_slow")
        a("s_cbranch_scc1 L_slow")
        a("L_norm:")
        BO, BX = V_Q, V_S
        for qt in range(3):
            a(f"v_rcp_f32 v{V_L+4*qt}, v{V_L+4*qt}")
        a(f"s_mul_i32 s{S_T}, s{S_W}, 12288"); a(f"s_add_u32 s{S_T}, s{S_T}, {L_EX}")
        a(f"s_xor_b32 s{S_T+1}, s{S_W}, 2"); a(f"s_mul_i32 s{S_T+1}, s{S_T+1}, 12288"); a(f"s_add_u32 s{S_T+1}, s{S_T+1}, {L_EX}")
        for qt in range(3):
            a(f"v_mov_b32 v{V_L+4*qt+1}, v{V_L+4*qt}")
        a(f"v_lshlrev_b32 v{V_T0}, 4, v{L}")
        a(f"v_add_u32 v{V_T1}, s{S_T+1}, v{V_T0}")
        a(f"v_add_u32 v{V_T0}, s{S_T}, v{V_T0}")
        for ks in range(4):
            for qt in range(3):
                ta = V_O + ((2 * ks) * 3 + qt) * 4; tb = V_O + ((2 * ks + 1) * 3 + qt) * 4
                for b in (ta, ta + 2, tb, tb + 2):
                    a(f"v_pk_mul_f32 {vr(b,2)}, {vr(b,2)}, {vr(V_L+4*qt,2)}")
                d = BO + (ks * 3 + qt) * 4
                a(f"v_cvt_pk_bf16_f32 v{d}, v{ta}, v{ta+1}"); a(f"v_cvt_pk_bf16_f32 v{d+1}, v{ta+2}, v{ta+3}")
                a(f"v_cvt_pk_bf16_f32 v{d+2}, v{tb}, v{tb+1}"); a(f"v_cvt_pk_bf16_f32 v{d+3}, v{tb+2}, v{tb+3}")
                a(f"ds_write_b128 v{V_T0}, {vr(d)} offset:{(ks*3+qt)*1024}")
        a(f"v_and_b32 v{V_A0}, 3, v{L}"); a(f"v_lshlrev_b32 v{V_A0}, 3, v{V_A0}")
        a(f"v_bfe_u32 v{V_A1}, v{L}, 2, 3"); a(f"v_lshl_add_u32 v{V_A0}, v{V_A1}, 6, v{V_A0}")
        a(f"v_bfe_u32 v{V_A1}, v{L}, 4, 1"); a(f"v_lshl_add_u32 v{V_A0}, v{V_A1}, 5, v{V_A0}")
        a(f"v_lshrrev_b32 v{V_A1}, 5, v{L}"); a(f"v_lshl_add_u32 v{V_A0}, v{V_A1}, 10, v{V_A0}")
        a(f"s_lshr_b32 s{S_T}, s{S_W}, 1"); a(f"s_mul_i32 s{S_T}, s{S_T}, {16384+512}")
        a(f"v_add_u32 v{V_A0}, s{S_T}, v{V_A0}")
        a(f"v_xor_b32 v{V_A1}, 32, v{V_A0}")
        a(f"v_xor_b32 v{V_A2}, 0x4000, v{V_A0}")
        a(f"v_xor_b32 v{V_A3}, 0x4000, v{V_A1}")
        VST = V_T2
        a(f"s_mul_i32 s{S_T}, s{S_W}, 3072")
        a(f"v_lshlrev_b32 v{VST}, 4, v{L}"); a(f"v_add_u32 v{VST}, s{S_T}, v{VST}")
        a(f"s_mov_b32 s62, s{S_PART}")
        a(f"s_mov_b32 s{S_SLOT}, 0")
        a(f"s_mov_b32 s60, {(-4*32768) & 0xffffffff}"); a("s_mov_b32 s61, 32768")
        a("s_waitcnt lgkmcnt(0)")
        st.q = []
        ACC = V_O
        PK = V_O + 24
        for r in range(0): pass
        def order(n):
            if n == 0: return [(tl, oh, ks) for oh in range(2) for tl in range(2) for ks in range(4)]
            return [(tl, oh, ks) for tl in range(2) for oh in range(2) for ks in range(4)]
        seq = [(n,) + f for n in range(10) for f in order(n)]
        def rd(i):
            n, tl, oh, ks = seq[i]
            fr = V_FR + 4 * (i % 4)
            ad = [V_A0, V_A1, V_A2, V_A3][oh * 2 + tl]
            return [('R', f"ds_read_b64_tr_b16 {vr(fr,2)}, v{ad} offset:{ks*4096}", (i, 0)),
                    ('R', f"ds_read_b64_tr_b16 {vr(fr+2,2)}, v{ad} offset:{ks*4096+2048}", i)]
        def cvts(tl):
            o = []
            for qt in range(3):
                s = ACC + 12 * tl + 4 * qt
                for h in range(2): o.append(f"v_cvt_pk_bf16_f32 v{PK + qt*4 + tl*2 + h}, v{s+2*h}, v{s+2*h+1}")
            return o
        def stores():
            return [f"buffer_store_dwordx4 {vr(PK+4*qt)}, v{VST}, s[{S_WS}:{S_WS+3}], s62 offen offset:{qt*1024}{self.spol}" for qt in range(3)] + \
                   ["s_add_u32 s62, s62, 12288"]
        pro = [('X', "s_barrier")]
        for i in range(4): pro += rd(i)
        self.emit(st.run(pro))
        self.stamp(3)
        if self.stamps: st.q = []
        steps = []
        for n in range(9):
            ops = []; pend = []
            extra = {}
            if n == 0:
                xr = [('R', f"ds_read_b128 {vr(BX + 4*j)}, v{V_T1} offset:{j*1024}", ('BX', j)) for j in range(12)]
                for j in range(12): extra.setdefault(j // 2, []).append(xr[j])
                ca = cvts(0)
                for j in range(6): extra.setdefault(13 + j // 2, []).append(('X', ca[j]))
            else:
                cb = cvts(1); ca = cvts(0); ss = stores()
                for j in range(6): extra.setdefault(1 + j // 2, []).append(('X', cb[j]))
                for j in range(4): extra.setdefault(4 + j, []).append(('X', ss[j]))
                for j in range(6): extra.setdefault(9 + j // 2, []).append(('X', ca[j]))
            for f in range(16):
                i = n * 16 + f
                _, tl, oh, ks = seq[i]
                fr = V_FR + 4 * (i % 4)
                first = (oh == 0 and ks == 0)
                for qt in range(3):
                    d = ACC + 12 * tl + 4 * qt
                    B = (BO if oh == 0 else BX) + (ks * 3 + qt) * 4
                    needs = [i] + ([('BX', ks * 3 + qt)] if oh == 1 else [])
                    ops.append(('M', f"{MF} {vr(d)}, {vr(fr)}, {vr(B)}, {'0' if first else vr(d)}", needs))
                    if qt == 0 and pend: ops.append(pend.pop(0))
                    if qt == 1:
                        ops += extra.get(f, [])
                        if f == 11: ops += [('X', s) for s in self.ring_adv(5, 0, 0)]
                        if f == 12:
                            ops.append(('X', "s_barrier"))
                            ops += [('X', f"v_add_u32 v{r}, s{S_D0}, v{r}") for r in (V_A0, V_A1, V_A2, V_A3)]
                    if qt == 2:
                        nr = rd(i + 4)
                        ops.append(nr[0])
                        if f == 15: ops.append(nr[1])
                        else: pend.append(nr[1])
            steps.append(st.run(ops))
        self.emit(steps[0])
        self.roll(steps, 1, 1, 8, "L_p3", allow_first=True)
        a("s_nop 7"); a("s_nop 1")
        self.emit(cvts(1)); self.emit(stores())
        a("s_waitcnt lgkmcnt(0)")

    def write_stamps(self, n):
        a = self.a
        if not self.stamps: return
        a("s_waitcnt vmcnt(0)")
        self.stamp(n - 1)
        a(f"s_cmp_lg_u32 s{S_W}, 0")
        a("s_cbranch_scc1 L_done")
        a("s_mov_b64 exec, 1")
        if self.dbg:
            words = [1, 2, 3, 5, 6, 7, 9, 10, 11, 13, 14, 15]
            a("v_mov_b32 v1, 0")
            a(f"s_not_b32 s{S_T}, s{S_ST}")
            a(f"v_mov_b32 v4, s{S_T}")
            a(f"buffer_atomic_umax v4, v1, s[{S_DBG}:{S_DBG+3}], 0 offen offset:{4*words[0]} sc1")
            for j in range(n):
                a(f"v_mov_b32 v{5+j}, s{S_ST+2*j}")
                a(f"buffer_atomic_umax v{5+j}, v1, s[{S_DBG}:{S_DBG+3}], 0 offen offset:{4*words[1+j]} sc1")
            return
        a(f"s_mul_i32 s{S_T}, s2, {8*n}")
        a(f"s_add_u32 s{S_T}, s{S_T}, {STAMP_OFF}")
        a(f"v_mov_b32 v1, s{S_T}")
        for j in range(n):
            a(f"v_mov_b32 v4, s{S_ST+2*j}"); a(f"v_mov_b32 v5, s{S_ST+2*j+1}")
            a(f"buffer_store_dwordx2 v[4:5], v1, s[{S_WS}:{S_WS+3}], 0 offen offset:{8*j}")
            a("s_nop 1")

    def reducer(self):
        a = self.a
        a("L_fin:")
        a("s_waitcnt vmcnt(0)")
        a("s_barrier")
        self.stamp(4)
        a("L_red:")
        a(f"s_lshl_b32 s{S_T}, s{S_W}, 6")
        a(f"v_add_u32 v0, s{S_T}, v{V_LANE}")
        a(f"s_mul_i32 s{S_T}, s{S_H}, 432")
        a(f"v_add_u32 v1, s{S_T}, v0")
        a("v_lshlrev_b32 v2, 4, v1")
        a(f"s_mul_i32 s{S_T+1}, s{S_B}, {16*PART_BYTES}")
        a("v_cmp_gt_u32 vcc, 432, v0")
        a("s_barrier")
        self.stamp(5)
        a("s_and_b64 exec, exec, vcc")
        a("s_cbranch_execz L_done")
        for p in range(16):
            a(f"buffer_load_dwordx4 {vr(16+4*p)}, v2, s[{S_WS}:{S_WS+3}], s{S_T+1} offen sc0 sc1")
            if p < 15: a(f"s_add_u32 s{S_T+1}, s{S_T+1}, {PART_BYTES}")
        a("v_lshrrev_b32 v3, 6, v1")
        a("v_mul_u32_u24 v4, 0x5556, v3"); a("v_lshrrev_b32 v4, 16, v4")
        a("v_mul_u32_u24 v5, 3, v4"); a("v_sub_u32 v5, v3, v5")
        a("v_and_b32 v6, 1, v4"); a("v_mul_u32_u24 v6, 48, v6")
        a("v_lshl_add_u32 v6, v5, 4, v6")
        a("v_and_b32 v7, 15, v1"); a("v_add_u32 v6, v6, v7")
        a("v_mul_u32_u24 v6, 1152, v6")
        a("v_lshrrev_b32 v7, 1, v4"); a("v_lshl_add_u32 v6, v7, 6, v6")
        a("v_bfe_u32 v7, v1, 4, 2"); a("v_lshl_add_u32 v6, v7, 3, v6")
        a(f"s_mov_b32 s{S_T}, 0xffff0000")
        for p in range(16):
            a(f"s_waitcnt vmcnt({15-p})")
            for r in range(4):
                src = 16 + 4 * p + r
                if p == 0:
                    a(f"v_lshlrev_b32 v{8+2*r}, 16, v{src}"); a(f"v_and_b32 v{9+2*r}, s{S_T}, v{src}")
                else:
                    a(f"v_lshlrev_b32 v2, 16, v{src}"); a(f"v_and_b32 v3, s{S_T}, v{src}")
                    a(f"v_add_f32 v{8+2*r}, v{8+2*r}, v2"); a(f"v_add_f32 v{9+2*r}, v{9+2*r}, v3")
        for r in range(4): a(f"v_cvt_pk_bf16_f32 v{16+r}, v{8+2*r}, v{9+2*r}")
        a(f"buffer_store_dwordx2 v[16:17], v6, s[{S_OUT}:{S_OUT+3}], s{S_XOFF} offen")
        a(f"buffer_store_dwordx2 v[18:19], v6, s[{S_OUT}:{S_OUT+3}], s{S_XOFF} offen offset:32")

    def build(self):
        a = self.a
        k1 = NAME + "_kernel"
        header(a, [(k1, 256, 512, 160 * 1024)])
        kstart(a, k1)
        self.prologue()
        st = Stream()
        self.phase1(st)
        self.phase2(st)
        self.phase3(st)
        self.reducer()
        self.write_stamps(7)
        if self.pad:
            a(f"s_cmp_lg_u32 s{S_W}, 0"); a("s_cbranch_scc1 L_done")
            a(f"s_add_u32 s60, s{S_ST}, {self.pad}")
            a("L_pad:")
            a("s_sleep 8")
            a("s_memrealtime s[62:63]"); a("s_waitcnt lgkmcnt(0)")
            a("s_sub_u32 s62, s62, s60"); a("s_cmp_lt_i32 s62, 0"); a("s_cbranch_scc1 L_pad")
        a("s_branch L_done")
        self.slowpath()
        self.loader()
        a("L_done:")
        a("s_endpgm")
        kdesc(a, k1)
        return a.text()

if __name__ == "__main__":
    import argparse
    ap = argparse.ArgumentParser()
    ap.add_argument("-o", default="v1.s")
    ap.add_argument("--stamps", action="store_true")
    ap.add_argument("--slow", action="store_true")
    ap.add_argument("--dbg", action="store_true")
    ap.add_argument("--delay", type=int, default=0)
    ap.add_argument("--pad", type=int, default=0)
    ap.add_argument("--kvpol", default=" nt")
    ap.add_argument("--spol", default=" sc0 sc1")
    x = ap.parse_args()
    g = Gen(stamps=x.stamps or x.dbg, kvpol=x.kvpol, spol=x.spol, force_slow=x.slow, dbg=x.dbg, delay=x.delay, pad=x.pad)
    open(x.o, "w").write(g.build())
```
